```python
import torch

def _softmax(x, axis=-1):
    return torch.softmax(x, dim=axis)
def _gelu(x):
    return torch.nn.functional.gelu(x, approximate="tanh")
def _silu(x):
    return torch.nn.functional.silu(x)
def _sigmoid(x):
    return torch.sigmoid(x)
def _layernorm(x, axis=-1, eps=1e-5):
    m = x.mean(dim=axis, keepdim=True)
    v = x.var(dim=axis, keepdim=True, unbiased=False)
    return (x - m) / torch.sqrt(v + eps)
def _scatter_add(tgt, idx, src, axis=0):
    return tgt.clone().index_add_(axis, idx, src)
def _segment_sum(src, seg, n):
    out = torch.zeros((n,) + src.shape[1:], dtype=src.dtype)
    return out.index_add_(0, seg, src)
def _pad(x, pw):
    flat = tuple(v for pair in reversed(pw) for v in pair)
    return torch.nn.functional.pad(x, flat)

kernel_name = 'interleave_layers__spectral_fnet__spectral_fnet__prompt'

def setup_inputs():

    _w = (lambda a: (lambda t: t.to(torch.bfloat16) if t.is_floating_point() else t)(torch.as_tensor(a)))
    def _A_setup():
        B, S, D = 1, 2048, 1024
        ns = torch.arange(S)[:, None] * torch.arange(S)[None, :]
        nd = torch.arange(D)[:, None] * torch.arange(D)[None, :]
        Ws_re = torch.cos(-2.0 * torch.pi * ns / S).to(float)
        Ws_im = torch.sin(-2.0 * torch.pi * ns / S).to(float)
        Wd_re = torch.cos(-2.0 * torch.pi * nd / D).to(float)
        Wd_im = torch.sin(-2.0 * torch.pi * nd / D).to(float)
        return {
            "x": _w((lambda *s: torch.randn(*s, dtype=torch.bfloat16) * 0.05)(B, S, D)),
            "dft_seq_re": _w(Ws_re),
            "dft_seq_im": _w(Ws_im),
            "dft_hid_re": _w(Wd_re),
            "dft_hid_im": _w(Wd_im),
        }
    _A_in = _A_setup()

    def _B_setup():
        B, S, D = 1, 2048, 1024
        ns = torch.arange(S)[:, None] * torch.arange(S)[None, :]
        nd = torch.arange(D)[:, None] * torch.arange(D)[None, :]
        Ws_re = torch.cos(-2.0 * torch.pi * ns / S).to(float)
        Ws_im = torch.sin(-2.0 * torch.pi * ns / S).to(float)
        Wd_re = torch.cos(-2.0 * torch.pi * nd / D).to(float)
        Wd_im = torch.sin(-2.0 * torch.pi * nd / D).to(float)
        return {
            "x": _w((lambda *s: torch.randn(*s, dtype=torch.bfloat16) * 0.05)(B, S, D)),
            "dft_seq_re": _w(Ws_re),
            "dft_seq_im": _w(Ws_im),
            "dft_hid_re": _w(Wd_re),
            "dft_hid_im": _w(Wd_im),
        }
    _B_in = _B_setup()

    return {
        "A_x": _A_in["x"],
        "A_dft_seq_re": _A_in["dft_seq_re"],
        "A_dft_seq_im": _A_in["dft_seq_im"],
        "A_dft_hid_re": _A_in["dft_hid_re"],
        "A_dft_hid_im": _A_in["dft_hid_im"],
        "B_x": _B_in["x"],
        "B_dft_seq_re": _B_in["dft_seq_re"],
        "B_dft_seq_im": _B_in["dft_seq_im"],
        "B_dft_hid_re": _B_in["dft_hid_re"],
        "B_dft_hid_im": _B_in["dft_hid_im"],
    }

def reference(A_x, A_dft_seq_re, A_dft_seq_im, A_dft_hid_re, A_dft_hid_im, B_x, B_dft_seq_re, B_dft_seq_im, B_dft_hid_re, B_dft_hid_im):
    def _A_ref(x, dft_seq_re, dft_seq_im, dft_hid_re, dft_hid_im):
        a = torch.einsum("bsd,ed->bse", x, dft_hid_re)
        b = torch.einsum("bsd,ed->bse", x, dft_hid_im)
        y = torch.einsum("ts,bse->bte", dft_seq_re, a) - torch.einsum("ts,bse->bte", dft_seq_im, b)
        return y

    def _B_ref(x, dft_seq_re, dft_seq_im, dft_hid_re, dft_hid_im):
        a = torch.einsum("bsd,ed->bse", x, dft_hid_re)
        b = torch.einsum("bsd,ed->bse", x, dft_hid_im)
        y = torch.einsum("ts,bse->bte", dft_seq_re, a) - torch.einsum("ts,bse->bte", dft_seq_im, b)
        return y

    x = A_x
    x = x + _A_ref(_layernorm(x, axis=-1), A_dft_seq_re, A_dft_seq_im, A_dft_hid_re, A_dft_hid_im)
    x = x + _B_ref(_layernorm(x, axis=-1), B_dft_seq_re, B_dft_seq_im, B_dft_hid_re, B_dft_hid_im)
    x = x + _A_ref(_layernorm(x, axis=-1), A_dft_seq_re, A_dft_seq_im, A_dft_hid_re, A_dft_hid_im)
    x = x + _B_ref(_layernorm(x, axis=-1), B_dft_seq_re, B_dft_seq_im, B_dft_hid_re, B_dft_hid_im)
    return x
```

```python
NAME = "interleave_layers__spectral_fnet__spectral_fnet__prompt_kernel"
HEADER = open("interleave_layers__spectral_fnet__spectral_fnet__prompt.s.ref").read().split("; Override launch")[0]

class Asm:
    def __init__(self):
        self.lines = []
        self.nlab = 0
    def __call__(self, s):
        for ln in s.strip("\n").split("\n"):
            self.lines.append("    " + ln.strip() if not ln.strip().endswith(":") else ln.strip())
    def c(self, s):
        self.lines.append("    ; " + s)
    def label(self, base="L"):
        self.nlab += 1
        return f"{base}_{self.nlab}"
    def text(self):
        return "\n".join(self.lines) + "\n"

def wrap(body, grid, block, lds, vgpr, sgpr=96, agpr=0, tail=""):
    acc = (vgpr + 3) // 4 * 4
    nfv = acc + agpr if agpr else vgpr
    return (HEADER +
f"""; Override launch geometry by editing the next line (default: block=256,
; grid=ceil(out_elems/256), lds=0). Harness parses it; keep it on one line.
; @launch grid=({grid},1,1) block=({block},1,1) lds={lds}
.amdgcn_target "amdgcn-amd-amdhsa--gfx950"
.text
.globl {NAME}
.p2align 8
.type {NAME},@function
{NAME}:
{body}{tail}.section .rodata,"a"
.p2align 6
.amdhsa_kernel {NAME}
  .amdhsa_next_free_vgpr {nfv}
  .amdhsa_next_free_sgpr {sgpr}
  .amdhsa_accum_offset {acc}
  .amdhsa_group_segment_fixed_size 0
  .amdhsa_kernarg_size 104
  .amdhsa_user_sgpr_count 2
  .amdhsa_user_sgpr_kernarg_segment_ptr 1
  .amdhsa_system_sgpr_workgroup_id_x 1
.end_amdhsa_kernel
""")
```

```python
import re
REG = re.compile(r'\b([vs])(\d+)\b|\b([vs])\[(\d+):(\d+)\]|\b(vcc|exec|m0|scc)\b')
TRANS = ('v_sin_f32','v_cos_f32','v_rsq_f32','v_rcp_f32','v_sqrt_f32','v_exp_f32','v_log_f32')
def regs(s):
    out = set()
    for m in REG.finditer(s):
        if m.group(1): out.add(m.group(1) + m.group(2))
        elif m.group(3):
            for i in range(int(m.group(4)), int(m.group(5)) + 1): out.add(m.group(3) + str(i))
        else: out.add(m.group(6))
    return out
class I:
    def __init__(s, line):
        s.line = line
        t = line.split(';')[0].strip()
        s.label = t[:-1] if t.endswith(':') else None
        s.empty = (t == '' or s.label is not None or t.startswith('.'))
        s.op = ''; s.dst = set(); s.src = set(); s.kind = 'none'; s.ops = []
        if s.empty: return
        p = t.split(None, 1); s.op = p[0]
        rest = p[1] if len(p) > 1 else ''
        ops = []; d = 0; cur = ''
        for ch in rest:
            if ch == '[': d += 1
            if ch == ']': d -= 1
            if ch == ',' and d == 0: ops.append(cur.strip()); cur = ''
            else: cur += ch
        if cur.strip(): ops.append(cur.strip())
        if ops:
            w = ops[-1].split()
            s.mods = ' '.join(w[1:]); ops[-1] = w[0]
        else: s.mods = ''
        s.ops = ops
        op = s.op
        R = [regs(o) for o in ops]
        U = lambda L: set().union(*L) if L else set()
        if op.startswith('v_mfma'):
            s.kind = 'mfma'; s.dst = R[0]; s.srcab = R[1] | R[2]; s.srcc = R[3]; s.src = U(R[1:])
        elif op.startswith('v_'):
            s.kind = 'valu'
            s.trans = op.replace('_e32','').replace('_e64','') in TRANS
            s.dpp = ('_dpp' in op) or op.startswith('v_permlane')
            s.rl = op.startswith('v_readfirstlane') or op.startswith('v_readlane')
            if op.startswith('v_permlane') and 'swap' in op:
                s.dst = R[0] | R[1]; s.src = R[0] | R[1]
            elif op.startswith('v_cmpx'):
                s.dst = {'exec'} | R[0]; s.src = U(R[1:])
            elif re.match(r'v_(add|sub|subrev)_co_', op) or re.match(r'v_(addc|subb)_co', op):
                s.dst = R[0] | R[1]; s.src = U(R[2:])
            else:
                s.dst = R[0]; s.src = U(R[1:])
                if op.startswith('v_fmac') or op.startswith('v_mac') or '_dpp' in op or op.startswith('v_writelane') or 'mixlo' in op or 'mixhi' in op:
                    s.src |= R[0]
                if op.startswith('v_cndmask') and len(ops) == 3: s.src |= {'vcc'}
        elif op.startswith('ds_'):
            s.kind = 'ds'
            if op.startswith('ds_read') or op.startswith('ds_bpermute') or op.startswith('ds_permute') or '_rtn' in op:
                s.dst = R[0]; s.src = U(R[1:])
                if 'd16' in op: s.src |= R[0]
            else: s.src = U(R)
        elif op.startswith('global_') or op.startswith('buffer_'):
            s.kind = 'vmem'
            if 'load' in op: s.dst = R[0]; s.src = U(R[1:])
            else:
                s.src = U(R)
                s.wide = R[1] if ('x3' in op or 'x4' in op) else set()
        elif op.startswith('s_'):
            s.kind = 'salu'
            if op in ('s_nop','s_waitcnt','s_barrier','s_endpgm','s_setprio','s_sleep') or op.startswith('s_cbranch') or op == 's_branch' or op.startswith('s_cmp') or op.startswith('s_bitcmp'):
                s.src = U(R)
            else:
                s.dst = R[0]; s.src = U(R[1:])
                if 'saveexec' in op: s.dst |= {'exec'}
        else:
            raise ValueError('unknown op ' + line)
    def ws(s):
        if s.empty: return 0
        if s.op == 's_nop': return int(s.ops[0], 0) + 1
        return 1
isv = lambda r: r[0] == 'v' and r != 'vcc'
iss = lambda r: r[0] == 's' and r != 'scc' or r == 'vcc'
def need(p, c):
    n = 0
    if p.kind == 'valu':
        pv = {r for r in p.dst if isv(r)}; ps = {r for r in p.dst if iss(r)}
        if c.kind == 'mfma' and pv & c.src: n = max(n, 2)
        if c.kind == 'vmem' and ps & c.src: n = max(n, 5)
        if c.kind == 'valu':
            if ps & c.src: n = max(n, 4 if c.rl or c.op.startswith('v_writelane') else 2)
            if c.rl and pv & c.src: n = max(n, 1)
            if p.trans and pv & c.src: n = max(n, 1)
            if c.dpp and pv & c.src: n = max(n, 2)
            if 'exec' in p.dst and c.dpp: n = max(n, 5)
        if c.kind in ('ds','vmem') and p.trans and pv & c.src: n = max(n, 1)
        if 'exec' in p.dst and c.kind == 'mfma': n = max(n, 4)
        if c.kind == 'salu' and c.op.startswith('s_cbranch_vcc') and 'vcc' in p.dst: n = max(n, 0)
    if p.kind == 'mfma':
        if c.kind == 'valu' and (p.dst & (c.src | c.dst)): n = max(n, 8)
        if c.kind in ('vmem','ds') and (p.dst & (c.src | c.dst)): n = max(n, 8)
        if c.kind == 'mfma':
            if p.dst & c.srcab: n = max(n, 8)
            if p.dst & c.srcc and p.dst != c.srcc: n = max(n, 6)
            if p.dst & c.dst and not (p.dst == c.srcc): n = max(n, 6)
        if c.kind == 'valu' and (p.srcc & c.dst): n = max(n, 3)
    if p.kind == 'vmem' and getattr(p, 'wide', None):
        if c.kind in ('valu','mfma') and (p.wide & c.dst): n = max(n, 2)
        if c.kind in ('ds','vmem') and (p.wide & c.dst): n = max(n, 1)
    if p.kind == 'salu' and 'm0' in p.dst and c.kind in ('ds','valu') and 'm0' in c.src: n = max(n, 1)
    return n
W = 10
def fix(text):
    ins = [I(l) for l in text.split('\n')]
    out = []
    for c in ins:
        if not c.empty:
            dist = 0; req = 0
            for p in reversed(out):
                if p.empty: continue
                if p.op in ('s_branch','s_endpgm'): break
                r = need(p, c) - dist
                req = max(req, r)
                dist += p.ws()
                if dist >= W: break
            if req > 0:
                out.append(I(f'    s_nop {req-1}'))
        out.append(c)
    lab = {c.label: i for i, c in enumerate(out) if c.label}
    errs = []
    for i, b in enumerate(out):
        if b.op.startswith('s_cbranch') or b.op == 's_branch':
            tgt = lab[b.ops[0]]
            pre = [x for x in out[max(0, i - 3 * W):i + 1] if not x.empty][-W:]
            post = []
            for x in out[tgt:tgt + 4 * W]:
                if x.empty: continue
                post.append(x)
                if x.op in ('s_branch','s_endpgm') or len(post) >= W: break
            for k, c in enumerate(post):
                dist = sum(x.ws() for x in post[:k])
                for p in reversed(pre):
                    if need(p, c) > dist: errs.append(f'branch hazard {p.line.strip()} -> {c.line.strip()} (via {b.line.strip()})')
                    dist += p.ws()
    assert not errs, '\n'.join(errs)
    return '\n'.join(c.line for c in out)
```

```python
import numpy as np
def bm(x, m):
    x = np.asarray(x); r = np.zeros_like(x)
    for s, d in m:
        r = r | (((x >> s) & 1) << d)
    return r
XC_OF_T = [(5,0),(7,1),(3,2),(1,3),(2,4),(6,5),(4,6)]
XE_OF_T = [(1,0),(2,1),(5,2),(6,3),(7,4),(3,6),(4,7)]
YW_OF_T = [(1,0),(3,1),(4,2),(2,3),(5,4),(6,5),(7,6)]
YA_OF_T = [(0,0),(1,1),(2,2),(5,3),(6,4),(3,5),(4,6),(7,7)]
A_OF_W = [(0,1),(3,2),(4,3),(5,4),(1,5),(2,6),(6,7),(7,8)]
E_OF_C = [(3,0),(4,1),(0,2),(5,3),(1,4),(2,6),(6,7),(7,8)]
POS_OF_C = [(3,1),(4,2),(5,3),(0,4),(1,5),(2,6),(6,7),(7,8)]
POS_OF_A = [(0,0),(2,1),(3,2),(4,3),(1,4),(5,5),(6,6),(7,7),(8,8)]
POS_OF_E = [(0,1),(1,2),(3,3),(2,4),(4,5),(6,6),(7,7),(8,8)]
def phys(pos): return pos ^ ((pos >> 4) & 1)
def e2_of_m(m): return (m & 3) | (((m >> 2) & 1) << 3) | (((m >> 3) & 1) << 2)
def xin_addr(d):
    dl = d & 31; dh = d >> 5
    return dl * 64 + (((dh >> 3) ^ ((dl >> 1) & 3)) * 16) + (dh & 7) * 2
def yin_addr(s):
    sl = s & 31; sh = s >> 5
    return sl * 128 + (((sh >> 2) ^ (sl & 7)) * 16) + (sh & 3) * 4
def io_addr(d): return 2 * d + 16 * (d >> 6)
if __name__ == "__main__":
    c = np.arange(256)
    for col in (0, 1):
        e = bm(c, E_OF_C) | (col << 5)
        assert (bm(e, POS_OF_E) == bm(c, POS_OF_C)).all()
    for g in (0, 1):
        a = bm(c, A_OF_W) | g
        assert (bm(a, POS_OF_A) == (bm(c, POS_OF_C) | g)).all()
    t = np.arange(256)
    assert (bm(bm(t, XC_OF_T), E_OF_C) == bm(t, XE_OF_T)).all()
    assert ((bm(bm(t, YW_OF_T), A_OF_W) | (t & 1)) == bm(t, YA_OF_T)).all()
    print("maps ok")
```

```python
import sys, struct
from gcommon import *
from maps import *
import hz

def f2u(x): return struct.unpack('<I', struct.pack('<f', x))[0]
def fh(x): return hex(f2u(x))

XIN = 0; XAREA = 4128
YIN = 12416
OUT = YIN + 8192
JUNK = OUT + 8192
ST = JUNK + 2560
IO = ST + 512
IOAREA = 9280; IOROW = 2304
LDS = IO + 3 * IOAREA
assert YIN % 128 == 0 and OUT % 16 == 0 and ST % 16 == 0 and IO % 16 == 0
FLG = 0x3000000; EPO = 0x3010000; STAMP = 0x4000000

class RA:
    def __init__(s, start): s.n = start; s.names = {}
    def __call__(s, name, cnt=1, align=1):
        s.n = (s.n + align - 1) // align * align
        r = s.n; s.n += cnt; s.names[name] = r; return r
def v(r, n=1): return f"v{r}" if n == 1 else f"v[{r}:{r+n-1}]"
def sr(r, n=1): return f"s{r}" if n == 1 else f"s[{r}:{r+n-1}]"

def runs(m):
    m = sorted(m); out = []
    for s_, d in m:
        if out and out[-1][0] + out[-1][2] == s_ and out[-1][1] + out[-1][2] == d: out[-1][2] += 1
        else: out.append([s_, d, 1])
    return out

def gen(stamps=False, nlayers=4, dbg=None):
    a = Asm()
    R = RA(1)
    TC = R('TC', 8, 2); TS = R('TS', 8, 2); QC = R('QC', 8, 2); QS = R('QS', 8, 2)
    B1XC = R('B1XC', 4, 2); B1XS = R('B1XS', 4, 2)
    B1Y = R('B1Y', 16, 2)
    A2 = R('A2', 32, 2)
    S = R('S', 16, 2); A = R('A', 16, 2)
    CA2 = R('CA2', 2, 2); CA = R('CA', 2, 2); CAO = R('CAO', 2, 2); PAR = R('PAR', 2, 2)
    VM = PAR + 1
    SENT = R('SENT', 4, 2)
    XW = R('XW', 8); XR = R('XR'); XOA = R('XOA'); XOB = R('XOB'); OR_ = R('OR')
    GST = R('GST', 4); PX = R('PX', 2); PY = R('PY', 2); YW = R('YW', 4); YR = R('YR', 2); YO = R('YO', 8)
    SA = R('SA'); SRD = R('SRD')
    IOA = R('IOA', 8); ION = R('ION', 2); IOL = R('IOL'); IOG = R('IOG', 4)
    FL = R('FL', 3)
    STV = R('STV')
    T = R('T', 0, 4)
    T = (R.n + 3) // 4 * 4
    NT = 64
    assert T + NT <= 256, T + NT
    sX, sO, sW = 4, 6, 8
    sB = 10; sWV = 12; sA = 13; sL = 14; sFix = 15; sCnt = 16; sTag = 17; sC64 = 18
    sEPS = 19; sK16 = 20; sK32 = 22; sK8 = 24; sK2 = 26; sFB = 28; sT0 = 30; sT1 = 31; sT2 = 32; sT3 = 33
    sMS = 34; sM5 = 36; sEx = 38; sEpsP = 40; sSt = 42
    nst = [0]
    def stamp(k):
        if stamps: a(f"s_memrealtime {sr(sSt + 2*k, 2)}")
    def flush_stamps(ks, basefn):
        if not stamps: return
        a("s_waitcnt lgkmcnt(0)")
        for k in ks:
            a(f"s_lshl_b32 {sr(sT0)}, {sr(sL)}, 3")
            a(f"s_add_u32 {sr(sT0)}, {sr(sT0)}, {basefn(k)}")
            a(f"v_writelane_b32 {v(STV)}, {sr(sSt + 2*k)}, {sr(sT0)}")
    def vbm(dst, src, m, tmp, shift=0, first=True):
        for s_, d, w in runs(m):
            if first:
                if s_ == 0 and d + shift == 0: a(f"v_and_b32 {v(dst)}, {(1<<w)-1}, {v(src)}")
                else:
                    a(f"v_bfe_u32 {v(dst)}, {v(src)}, {s_}, {w}")
                    if d + shift: a(f"v_lshlrev_b32 {v(dst)}, {d+shift}, {v(dst)}")
                first = False
            else:
                a(f"v_bfe_u32 {v(tmp)}, {v(src)}, {s_}, {w}")
                a(f"v_lshl_or_b32 {v(dst)}, {v(tmp)}, {d+shift}, {v(dst)}")
    def sbm(dst, src, m, tmp, shift=0):
        first = True
        for s_, d, w in runs(m):
            t = dst if first else tmp
            a(f"s_bfe_u32 {sr(t)}, {sr(src)}, {hex((w << 16) | s_)}")
            if d + shift: a(f"s_lshl_b32 {sr(t)}, {sr(t)}, {d+shift}")
            if not first: a(f"s_or_b32 {sr(dst)}, {sr(dst)}, {sr(tmp)}")
            first = False
    def pk(op, d, *srcs, mods=""):
        a(f"v_pk_{op}_f32 {v(d,2)}, " + ", ".join(x if isinstance(x, str) else v(x, 2) for x in srcs) + (" " + mods if mods else ""))
    def mfma(d, x, y, c):
        a(f"v_mfma_f32_16x16x32_f16 {v(d,4)}, {v(x,4)}, {v(y,4)}, {c if isinstance(c,str) else v(c,4)}")
    t0, t1, t2, t3, t4, t5, t6, t7 = [T + 48 + i for i in range(8)]
    TV = T + 56; LN = T + 57; EB = T + 58; GI = T + 59; FE = T + 60; FB = T + 61; TT = T + 62; TU = T + 63

    a(f"""
    s_cmp_ge_u32 s2, 256
    s_cbranch_scc1 L_end
    s_load_dwordx2 {sr(sX,2)}, s[0:1], 0
    s_load_dwordx2 {sr(sO,2)}, s[0:1], 80
    s_load_dwordx2 {sr(sW,2)}, s[0:1], 96
    v_lshrrev_b32 {v(t0)}, 6, v0
    v_readfirstlane_b32 {sr(sWV)}, {v(t0)}
    s_mov_b32 {sr(sFix)}, 0
    s_cmp_eq_u32 s2, 0
    s_cselect_b32 {sr(sFix)}, 1, 0
    s_cmp_lt_u32 {sr(sWV)}, 4
    s_cbranch_scc1 L_main0
    s_cmp_lg_u32 s2, 0
    s_cbranch_scc1 L_end
    s_mov_b32 {sr(sFix)}, 2
    L_main0:
    """)
    stamp(0)
    sbm(sA, 2, A_OF_W, sT0)
    a(f"""
    s_lshr_b32 {sr(sT1)}, {sr(sWV)}, 1
    s_or_b32 {sr(sA)}, {sr(sA)}, {sr(sT1)}
    s_cmp_eq_u32 {sr(sFix)}, 2
    s_cselect_b32 {sr(sA)}, 512, {sr(sA)}
    v_and_b32 {v(t0)}, 127, v0
    v_lshlrev_b32 {v(t1)}, 4, {v(t0)}
    s_lshl_b32 {sr(sT0)}, {sr(sA)}, 11
    v_add_u32 {v(IOG)}, {sr(sT0)}, {v(t1)}
    v_add_u32 {v(IOG+1)}, {hex(1024*2048)}, {v(IOG)}
    s_sub_u32 {sr(sT2)}, {hex(1024*2048)}, {sr(sT0)}
    v_add_u32 {v(IOG+2)}, {sr(sT2)}, {v(t1)}
    s_sub_u32 {sr(sT2)}, {hex(2048*2048)}, {sr(sT0)}
    s_and_b32 {sr(sT2)}, {sr(sT2)}, {hex(2048*2048-1)}
    v_add_u32 {v(IOG+3)}, {sr(sT2)}, {v(t1)}
    """)
    a(f"""
    v_and_b32 {v(t2)}, 255, v0
    v_lshrrev_b32 {v(t3)}, 4, {v(t2)}
    v_lshlrev_b32 {v(GST)}, 16, {v(t3)}
    v_and_b32 {v(t3)}, 15, v0
    v_lshl_or_b32 {v(GST)}, {v(t3)}, 4, {v(GST)}
    s_lshl_b32 {sr(sT2)}, s2, 8
    v_add_u32 {v(GST)}, {sr(sT2)}, {v(GST)}
    v_add_u32 {v(GST+1)}, 0x100000, {v(GST)}
    v_add_u32 {v(GST+2)}, 0x400000, {v(GST)}
    v_add_u32 {v(GST+3)}, 0x500000, {v(GST)}
    v_add_u32 {v(t4)}, 0x200000, {v(GST)}
    v_add_u32 {v(t5)}, 0x300000, {v(GST)}
    v_mov_b32 {v(SENT)}, -1
    v_mov_b32 {v(SENT+1)}, -1
    v_mov_b32 {v(SENT+2)}, -1
    v_mov_b32 {v(SENT+3)}, -1
    s_waitcnt lgkmcnt(0)
    """)
    for i in range(4):
        a(f"global_load_dwordx4 {v(T+4*i,4)}, {v(IOG+i)}, {sr(sX,2)}")
    a(f"""
    s_mov_b32 {sr(sB)}, {sr(sW)}
    s_mov_b32 {sr(sB+1)}, {sr(sW+1)}
    s_add_u32 {sr(sFB)}, {sr(sW)}, {hex(FLG)}
    s_addc_u32 {sr(sFB+1)}, {sr(sW+1)}, 0
    s_load_dword {sr(sTag)}, {sr(sFB,2)}, {hex(EPO-FLG)}
    s_cmp_eq_u32 {sr(sFix)}, 2
    s_cbranch_scc1 L_noclr0
    global_store_dwordx4 {v(GST)}, {v(SENT,4)}, {sr(sB,2)} sc1
    global_store_dwordx4 {v(GST+1)}, {v(SENT,4)}, {sr(sB,2)} sc1
    global_store_dwordx4 {v(t4)}, {v(SENT,4)}, {sr(sB,2)} sc1
    global_store_dwordx4 {v(t5)}, {v(SENT,4)}, {sr(sB,2)} sc1
    L_noclr0:
    """)
    a(f"""
    s_mov_b32 {sr(sC64)}, {fh(64.0)}
    s_mov_b32 {sr(sEPS)}, {fh(1e-5*16384.0)}
    s_mov_b32 {sr(sEpsP)}, {fh(1e-5*16384.0)}
    s_mov_b32 {sr(sEpsP+1)}, {fh(1e-5*16384.0)}
    s_mov_b32 {sr(sK16)}, {fh(16.0)}
    s_mov_b32 {sr(sK16+1)}, {fh(16.0)}
    s_mov_b32 {sr(sK32)}, {fh(32.0)}
    s_mov_b32 {sr(sK32+1)}, {fh(32.0)}
    s_mov_b32 {sr(sK8)}, {fh(0.125)}
    s_mov_b32 {sr(sK8+1)}, {fh(0.125)}
    s_mov_b32 {sr(sK2)}, {fh(2.0)}
    s_mov_b32 {sr(sK2+1)}, {fh(2.0)}
    s_mov_b32 {sr(sMS)}, 0x03030303
    s_mov_b32 {sr(sMS+1)}, 0x03030303
    s_mov_b32 {sr(sM5)}, 0x55555555
    s_mov_b32 {sr(sM5+1)}, 0x55555555
    s_mov_b32 {sr(sL)}, 0
    v_mov_b32 {v(STV)}, 0
    """)
    a(f"""
    v_mov_b32 {v(t6)}, 0
    v_and_b32 {v(t7)}, 127, v0
    v_lshlrev_b32 {v(t7)}, 2, {v(t7)}
    ds_write_b32 {v(t7)}, {v(t6)} offset:{ST}
    """)
    a(f"""
    v_and_b32 {v(LN)}, 63, v0
    v_mov_b32 {v(TV)}, v0
    v_and_b32 {v(GI)}, 1, v0
    s_cmp_eq_u32 {sr(sFix)}, 2
    s_cbranch_scc0 L_tv
    v_and_b32 {v(TV)}, 127, v0
    v_lshlrev_b32 {v(TV)}, 1, {v(TV)}
    v_mov_b32 {v(GI)}, 2
    L_tv:
    """)
    a(f"""
    s_lshr_b32 {sr(sT1)}, {sr(sWV)}, 1
    s_mul_i32 {sr(sT2)}, {sr(sT1)}, {IOAREA}
    s_add_u32 {sr(sT2)}, {sr(sT2)}, {IO}
    v_lshrrev_b32 {v(t1)}, 3, {v(t0)}
    v_add_u32 {v(t1)}, {v(t1)}, {v(t0)}
    v_lshlrev_b32 {v(IOL)}, 4, {v(t1)}
    v_add_u32 {v(IOL)}, {sr(sT2)}, {v(IOL)}
    """)
    vbm(EB, TV, XE_OF_T, TT)
    a(f"""
    v_bfe_u32 {v(t0)}, {v(TV)}, 1, 1
    v_cvt_f32_u32 {v(PAR)}, {v(t0)}
    v_mul_f32 {v(PAR)}, {fh(1.0/512)}, {v(PAR)}
    v_cmp_eq_u32 vcc, 0, {v(EB)}
    v_mov_b32 {v(VM)}, {sr(sC64)}
    v_cndmask_b32 {v(VM)}, {v(VM)}, 0, vcc
    v_mul_u32_u24 {v(t6)}, {XAREA}, {v(GI)}
    v_mul_u32_u24 {v(t7)}, {IOAREA}, {v(GI)}
    v_add_u32 {v(t7)}, {IO}, {v(t7)}
    """)
    if XIN: a(f"v_add_u32 {v(t6)}, {XIN}, {v(t6)}")
    def io_of(dst, d):
        a(f"v_lshrrev_b32 {v(TT)}, 6, {v(d)}")
        a(f"v_lshl_add_u32 {v(dst)}, {v(TT)}, 4, {v(t7)}")
        a(f"v_lshl_add_u32 {v(dst)}, {v(d)}, 1, {v(dst)}")
    def xin_of(dst, d):
        a(f"v_and_b32 {v(TT)}, 31, {v(d)}")
        a(f"v_lshl_add_u32 {v(dst)}, {v(TT)}, 6, {v(t6)}")
        a(f"v_lshrrev_b32 {v(TT)}, 7, {v(d)}")
        a(f"v_xor_b32 {v(TT)}, {v(TT)}, {v(d)}")
        a(f"v_bfe_u32 {v(TT)}, {v(TT)}, 1, 2")
        a(f"v_lshl_add_u32 {v(dst)}, {v(TT)}, 4, {v(dst)}")
        a(f"v_bfe_u32 {v(TT)}, {v(d)}, 5, 3")
        a(f"v_lshl_add_u32 {v(dst)}, {v(TT)}, 1, {v(dst)}")
    for sl in range(4):
        off = 32 * (sl & 1) + 256 * (sl >> 1)
        if sl == 0:
            a(f"v_mov_b32 {v(t1)}, 512")
            a(f"v_cndmask_b32 {v(t0)}, {v(EB)}, {v(t1)}, vcc")
        else:
            a(f"v_add_u32 {v(t0)}, {off}, {v(EB)}")
        a(f"v_sub_u32 {v(t1)}, {1024 - off}, {v(EB)}")
        a(f"v_and_b32 {v(t1)}, 1023, {v(t1)}")
        io_of(IOA + 2*sl, t0); io_of(IOA + 2*sl + 1, t1)
        xin_of(XW + 2*sl, t0); xin_of(XW + 2*sl + 1, t1)
    a(f"v_cndmask_b32 {v(ION)}, {v(IOA+1)}, {v(IOA)}, vcc")
    a(f"v_cndmask_b32 {v(ION+1)}, {v(IOA)}, {v(IOA+1)}, vcc")
    def ioneg(q):
        return ION + q if q < 2 else IOA + (q ^ 1)
    vbm(SA, LN, [(3,0),(4,1),(5,2)], TT, shift=2)
    a(f"""
    v_and_b32 {v(t0)}, 1, v0
    s_lshr_b32 {sr(sT1)}, {sr(sWV)}, 1
    s_lshl_b32 {sr(sT2)}, {sr(sT1)}, 6
    s_add_u32 {sr(sT2)}, {sr(sT2)}, {ST}
    s_cmp_eq_u32 {sr(sFix)}, 2
    s_cselect_b32 {sr(sT3)}, 6, 5
    v_lshlrev_b32 {v(t1)}, {sr(sT3)}, {v(t0)}
    v_add3_u32 {v(SA)}, {v(SA)}, {v(t1)}, {sr(sT2)}
    v_lshlrev_b32 {v(SRD)}, 5, {v(GI)}
    v_lshlrev_b32 {v(t1)}, 5, {v(GI)}
    v_and_b32 {v(t1)}, 64, {v(t1)}
    v_add_u32 {v(SRD)}, {v(SRD)}, {v(t1)}
    """)
    a(f"v_add_u32 {v(SRD)}, {ST}, {v(SRD)}")
    a(f"""
    s_mul_i32 {sr(sT2)}, {sr(sT1)}, {XAREA}
    s_add_u32 {sr(sT2)}, {sr(sT2)}, {XIN}
    v_and_b32 {v(t0)}, 15, v0
    v_lshrrev_b32 {v(t1)}, 3, {v(LN)}
    v_xor_b32 {v(t1)}, {v(t1)}, {v(LN)}
    v_bfe_u32 {v(t1)}, {v(t1)}, 1, 2
    v_lshlrev_b32 {v(XR)}, 6, {v(t0)}
    v_lshl_add_u32 {v(XR)}, {v(t1)}, 4, {v(XR)}
    v_add_u32 {v(XR)}, {sr(sT2)}, {v(XR)}
    """)
    a(f"""
    s_and_b32 {sr(sT3)}, {sr(sWV)}, 1
    s_lshl_b32 {sr(sT3)}, {sr(sT3)}, 4
    v_add_u32 {v(t1)}, {sr(sT3)}, {v(t0)}
    v_cvt_f32_u32 {v(FE)}, {v(t1)}
    v_lshrrev_b32 {v(t2)}, 4, {v(LN)}
    v_cvt_f32_u32 {v(FB)}, {v(t2)}
    v_mul_f32 {v(t3)}, {fh(1.0/1024)}, {v(FE)}
    v_mul_f32 {v(t4)}, 4.0, {v(FB)}
    v_mul_f32 {v(t4)}, {v(t4)}, {v(t3)}
    v_cvt_f32_u32 {v(t5)}, {sr(sA)}
    v_mov_b32 {v(t6)}, {fh(-0.25)}
    v_fmac_f32 {v(t6)}, {fh(1.0/2048)}, {v(t5)}
    """)
    for mt in range(2):
        for r in range(4):
            i = 4*mt + r
            a(f"v_fmamk_f32 {v(TT)}, {v(t3)}, {fh(16.0*mt + r)}, {v(t4)}")
            a(f"v_add_f32 {v(TU)}, {v(TT)}, {v(t6)}")
            a(f"v_cos_f32 {v(TC+i)}, {v(TT)}")
            a(f"v_sin_f32 {v(TS+i)}, {v(TT)}")
            a(f"v_cos_f32 {v(QC+i)}, {v(TU)}")
            a(f"v_sin_f32 {v(QS+i)}, {v(TU)}")
    a(f"""
    v_mul_f32 {v(t3)}, {fh(1.0/32)}, {v(FE)}
    v_mul_f32 {v(t4)}, {fh(8.0)}, {v(FB)}
    v_mul_f32 {v(t4)}, {v(t4)}, {v(t3)}
    """)
    for jp in range(4):
        a(f"v_fmamk_f32 {v(TT)}, {v(t3)}, {fh(2.0*jp)}, {v(t4)}")
        a(f"v_fmamk_f32 {v(TU)}, {v(t3)}, {fh(2.0*jp+1)}, {v(t4)}")
        a(f"v_cos_f32 {v(t0)}, {v(TT)}")
        a(f"v_cos_f32 {v(t1)}, {v(TU)}")
        a(f"v_sin_f32 {v(t2)}, {v(TT)}")
        a(f"v_sin_f32 {v(t5)}, {v(TU)}")
        a(f"v_cvt_pk_f16_f32 {v(B1XC+jp)}, {v(t0)}, {v(t1)}")
        a(f"v_cvt_pk_f16_f32 {v(B1XS+jp)}, -{v(t2)}, -{v(t5)}")
    def dft_tab(base, fsrc, hi=None):
        a(f"v_mul_f32 {v(t3)}, {fh(1.0/32)}, {v(fsrc)}")
        a(f"v_mul_f32 {v(t4)}, 4.0, {v(FB)}")
        a(f"v_mul_f32 {v(t4)}, {v(t4)}, {v(t3)}")
        for k in range(2):
            for jj in range(4):
                a(f"v_fmamk_f32 {v(TT)}, {v(t3)}, {fh(16.0*k + jj)}, {v(t4)}")
                a(f"v_cos_f32 {v(t0)}, {v(TT)}")
                a(f"v_sin_f32 {v(t1)}, {v(TT)}")
                a(f"v_cvt_pk_f16_f32 {v(base+8*k+jj)}, {v(t0)}, {v(t1)}")
                a(f"v_cvt_pk_f16_f32 {v(base+8*k+4+jj)}, -{v(t1)}, {v(t0)}")
                if hi is not None:
                    if jj & 1:
                        a(f"v_cvt_pk_f16_f32 {v(hi+8*k+jj)}, -{v(t0)}, -{v(t1)}")
                        a(f"v_cvt_pk_f16_f32 {v(hi+8*k+4+jj)}, {v(t1)}, -{v(t0)}")
                    else:
                        a(f"v_mov_b32 {v(hi+8*k+jj)}, {v(base+8*k+jj)}")
                        a(f"v_mov_b32 {v(hi+8*k+4+jj)}, {v(base+8*k+4+jj)}")
    dft_tab(B1Y, FE)
    vbm(t2, LN, [(0,0),(1,1),(2,3),(3,2)], TT)
    a(f"v_cvt_f32_u32 {v(FE)}, {v(t2)}")
    dft_tab(A2, FE, A2 + 16)
    vbm(XOA, LN, [(0,1),(1,2),(3,3),(2,4),(5,7),(4,8)], TT, shift=4)
    a(f"""
    v_bfe_u32 {v(t0)}, {v(LN)}, 2, 1
    s_bfe_u32 {sr(sT1)}, {sr(sWV)}, 0x10001
    v_xor_b32 {v(t0)}, {sr(sT1)}, {v(t0)}
    v_lshl_or_b32 {v(XOA)}, {v(t0)}, 4, {v(XOA)}
    s_and_b32 {sr(sT3)}, {sr(sWV)}, 1
    s_lshl_b32 {sr(sT3)}, {sr(sT3)}, 9
    s_add_u32 {sr(sT3)}, {sr(sT3)}, {OUT}
    v_add_u32 {v(XOA)}, {sr(sT3)}, {v(XOA)}
    v_add_u32 {v(XOB)}, 8, {v(XOA)}
    s_and_b32 {sr(sT2)}, {sr(sA)}, 511
    s_cmp_lg_u32 {sr(sT2)}, 0
    s_cbranch_scc1 L_xo
    s_cmp_eq_u32 {sr(sFix)}, 2
    s_cbranch_scc0 L_xo1
    v_mov_b32 {v(XOA)}, {v(XOB)}
    L_xo1:
    v_lshlrev_b32 {v(XOB)}, 3, {v(LN)}
    v_add_u32 {v(XOB)}, {JUNK}, {v(XOB)}
    L_xo:
    """)
    a(f"""
    v_and_b32 {v(t0)}, 255, v0
    v_bfe_u32 {v(t1)}, v0, 4, 1
    v_xor_b32 {v(t0)}, {v(t0)}, {v(t1)}
    v_lshlrev_b32 {v(OR_)}, 4, {v(t0)}
    v_add_u32 {v(OR_)}, {OUT}, {v(OR_)}
    """)
    sbm(sT2, 2, [(0,16),(1,17),(2,18),(6,19),(7,20),(3,5),(4,6),(5,7)], sT0)
    vbm(PX, TV, XC_OF_T, TT, shift=8)
    a(f"v_and_b32 {v(t0)}, 1, {v(TV)}")
    a(f"v_lshl_or_b32 {v(PX)}, {v(t0)}, 4, {v(PX)}")
    a(f"v_add_u32 {v(PX)}, {sr(sT2)}, {v(PX)}")
    a(f"v_add_u32 {v(PX+1)}, 0x8000, {v(PX)}")
    vbm(PY, 0, YW_OF_T, TT, shift=8)
    a(f"v_lshrrev_b32 {v(FL)}, 4, {v(PY)}")
    a(f"v_and_b32 {v(t0)}, 1, v0")
    a(f"v_lshl_or_b32 {v(PY)}, {v(t0)}, 4, {v(PY)}")
    a(f"v_add_u32 {v(PY)}, {sr(sT2)}, {v(PY)}")
    a(f"v_add_u32 {v(PY+1)}, 0x8000, {v(PY)}")
    def yin_of(dst, s_):
        a(f"v_and_b32 {v(TT)}, 31, {v(s_)}")
        a(f"v_lshlrev_b32 {v(dst)}, 7, {v(TT)}")
        a(f"v_lshrrev_b32 {v(TT)}, 7, {v(s_)}")
        a(f"v_xor_b32 {v(TT)}, {v(TT)}, {v(s_)}")
        a(f"v_and_b32 {v(TT)}, 7, {v(TT)}")
        a(f"v_lshl_add_u32 {v(dst)}, {v(TT)}, 4, {v(dst)}")
        a(f"v_bfe_u32 {v(TT)}, {v(s_)}, 5, 2")
        a(f"v_lshl_add_u32 {v(dst)}, {v(TT)}, 2, {v(dst)}")
        a(f"v_add_u32 {v(dst)}, {YIN}, {v(dst)}")
    vbm(t0, 0, YA_OF_T, TT)
    yin_of(YW, t0)
    a(f"""
    v_sub_u32 {v(t1)}, 1024, {v(t0)}
    v_mov_b32 {v(t2)}, 512
    v_cmp_eq_u32 vcc, 0, {v(t0)}
    v_cndmask_b32 {v(t1)}, {v(t1)}, {v(t2)}, vcc
    """)
    yin_of(YW + 1, t1)
    a(f"v_add_u32 {v(t1)}, 256, {v(t0)}")
    yin_of(YW + 2, t1)
    a(f"v_sub_u32 {v(t1)}, 768, {v(t0)}")
    yin_of(YW + 3, t1)
    a(f"""
    s_lshr_b32 {sr(sT1)}, {sr(sWV)}, 1
    s_lshl_b32 {sr(sT2)}, {sr(sT1)}, 12
    s_add_u32 {sr(sT2)}, {sr(sT2)}, {YIN}
    v_and_b32 {v(t0)}, 15, v0
    v_lshrrev_b32 {v(t1)}, 4, {v(LN)}
    v_and_b32 {v(t2)}, 7, v0
    v_xor_b32 {v(t1)}, {v(t1)}, {v(t2)}
    v_lshlrev_b32 {v(YR)}, 7, {v(t0)}
    v_lshl_add_u32 {v(YR)}, {v(t1)}, 4, {v(YR)}
    v_add_u32 {v(YR)}, {sr(sT2)}, {v(YR)}
    v_xor_b32 {v(YR+1)}, 64, {v(YR)}
    """)
    vbm(t0, LN, [(0,1),(1,2),(2,3),(3,4),(5,8)], TT)
    a(f"""
    s_and_b32 {sr(sT3)}, {sr(sWV)}, 1
    s_lshl_b32 {sr(sT3)}, {sr(sT3)}, 5
    v_or_b32 {v(t0)}, {sr(sT3)}, {v(t0)}
    v_bfe_u32 {v(t1)}, {v(LN)}, 4, 1
    v_cmp_eq_u32 vcc, 1, {v(t1)}
    v_lshlrev_b32 {v(t1)}, 3, {v(t1)}
    s_lshl_b32 {sr(sT2)}, {sr(sT1)}, 2
    v_add_u32 {v(t1)}, {sr(sT2)}, {v(t1)}
    v_mov_b32 {v(t5)}, 1024
    v_mov_b32 {v(t6)}, {hex((-1024) & 0xffffffff)}
    v_cndmask_b32 {v(t5)}, {v(t5)}, {v(t6)}, vcc
    """)
    for c in range(2):
        a(f"v_or_b32 {v(t2)}, {c}, {v(t0)}")
        a(f"v_sub_u32 {v(t3)}, 0, {v(t2)}")
        a(f"v_cndmask_b32 {v(t2)}, {v(t2)}, {v(t3)}, vcc")
        vbm(t3, t2, POS_OF_A, TT, shift=4)
        a(f"v_bfe_u32 {v(TT)}, {v(t2)}, 1, 1")
        a(f"v_lshlrev_b32 {v(TT)}, 4, {v(TT)}")
        a(f"v_xor_b32 {v(t3)}, {v(t3)}, {v(TT)}")
        a(f"v_add_u32 {v(t3)}, {v(t3)}, {v(t1)}")
        for r in range(4):
            if r: a(f"v_add_u32 {v(t3)}, {v(t3)}, {v(t5)}")
            a(f"v_and_b32 {v(YO+4*c+r)}, 8191, {v(t3)}")
    stamp(1)
    a("s_cmp_eq_u32 %s, 2" % sr(sFix))
    a("s_cbranch_scc1 L_w0")
    a("s_waitcnt vmcnt(4)")
    a("s_branch L_w1")
    a("L_w0:")
    a("s_waitcnt vmcnt(0)")
    a("L_w1:")
    for i in range(4):
        a(f"ds_write_b128 {v(IOL)}, {v(T+4*i,4)} offset:{i*IOROW}")
    a("s_waitcnt lgkmcnt(0)")
    a("s_barrier")
    stamp(2)
    a(f"s_mul_i32 {sr(sTag)}, {sr(sTag)}, 0x9E3779B1")
    a(f"s_add_u32 {sr(sTag)}, {sr(sTag)}, 0x7F4A7C15")
    for q in range(8):
        a(f"ds_read_u16 {v(T+2*q)}, {v(IOA+q)}")
        a(f"ds_read_u16 {v(T+2*q+1)}, {v(IOA+q)} offset:{IOROW}")
        a(f"ds_read_u16 {v(T+16+2*q)}, {v(ioneg(q))} offset:{3*IOROW}")
        a(f"ds_read_u16 {v(T+16+2*q+1)}, {v(ioneg(q))} offset:{2*IOROW}")
    a(f"s_mov_b32 {sr(sT2)}, 0.5")
    a(f"s_mov_b32 {sr(sT3)}, 0.5")
    for q in range(8):
        a(f"s_waitcnt lgkmcnt({min(15, 4*(7-q))})")
        for x in (T+2*q, T+2*q+1, T+16+2*q, T+16+2*q+1):
            a(f"v_lshlrev_b32 {v(x)}, 16, {v(x)}")
        pk("mul", T+2*q, T+2*q, sr(sT2, 2))
        pk("fma", S+2*q, T+16+2*q, sr(sT2, 2), T+2*q)
        pk("fma", A+2*q, T+16+2*q, sr(sT2, 2), T+2*q, mods="neg_lo:[1,0,0] neg_hi:[1,0,0]")
    V = T
    def sums(X, Y):
        pk("mul", V, X, X)
        if Y is not None: pk("mul", V+2, X, Y)
        pk("add", V+4, X, X+2)
        for q in range(1, 8):
            pk("fma", V, X+2*q, X+2*q, V)
            if Y is not None: pk("fma", V+2, X+2*q, Y+2*q, V+2)
            if q >= 2: pk("add", V+4, V+4, X+2*q)
        pk("mul", V+6, V+4, PAR, mods="op_sel_hi:[1,0]")
    def reduce_add(off):
        for i in range(4):
            a(f"v_permlane32_swap_b32 {v(V+i)}, {v(V+4+i)}")
        pk("add", V, V, V+4); pk("add", V+2, V+2, V+6)
        a(f"v_permlane16_swap_b32 {v(V)}, {v(V+2)}")
        a(f"v_permlane16_swap_b32 {v(V+1)}, {v(V+3)}")
        pk("add", V, V, V+2)
        a(f"v_add_f32_dpp {v(V+4)}, {v(V)}, {v(V)} row_ror:8 row_mask:0xf bank_mask:0x3")
        a(f"v_add_f32_dpp {v(V+4)}, {v(V+1)}, {v(V+1)} row_ror:8 row_mask:0xf bank_mask:0xc")
        a(f"v_add_f32_dpp {v(V+5)}, {v(V+4)}, {v(V+4)} row_shl:4 row_mask:0xf bank_mask:0xf bound_ctrl:0")
        a(f"v_add_f32_dpp {v(V+6)}, {v(V+5)}, {v(V+5)} quad_perm:[2,3,0,1] row_mask:0xf bank_mask:0xf")
        a(f"s_mov_b64 exec, {sr(sMS,2)}")
        a(f"ds_add_f32 {v(SA)}, {v(V+6)}" + (f" offset:{off}" if off else ""))
        a("s_mov_b64 exec, -1")
    a(f"v_mov_b32 {v(V+2)}, 0")
    a(f"v_mov_b32 {v(V+3)}, 0")
    sums(A, None)
    reduce_add(256)
    a("s_waitcnt vmcnt(0)")
    stamp(3)
    flush_stamps([0,1,2,3], lambda k: 40 + k)
    a("s_branch L_xstats")

    RX = T + 8
    def poll(P, name):
        a(f"""
        s_mov_b32 {sr(sCnt)}, 0
        L_poll{name}:
        global_load_dwordx4 {v(RX,4)}, {v(P)}, {sr(sB,2)} sc1
        global_load_dwordx4 {v(RX+4,4)}, {v(P+1)}, {sr(sB,2)} sc1
        s_waitcnt vmcnt(0)
        v_max3_u32 {v(T)}, {v(RX)}, {v(RX+1)}, {v(RX+2)}
        v_max3_u32 {v(T+1)}, {v(RX+3)}, {v(RX+4)}, {v(RX+5)}
        v_max3_u32 {v(T)}, {v(T)}, {v(RX+6)}, {v(RX+7)}
        v_max_u32 {v(T)}, {v(T)}, {v(T+1)}
        v_cmp_eq_u32 vcc, -1, {v(T)}
        s_cbranch_vccz L_done{name}
        s_mov_b64 exec, vcc
        s_add_u32 {sr(sCnt)}, {sr(sCnt)}, 1
        s_cmp_lt_u32 {sr(sCnt)}, 0x8000
        s_cbranch_scc1 L_poll{name}
        L_done{name}:
        s_mov_b64 exec, -1
        """)
    def clears():
        a(f"global_store_dwordx4 {v(GST+2)}, {v(SENT,4)}, {sr(sB,2)} sc1")
        a(f"global_store_dwordx4 {v(GST+3)}, {v(SENT,4)}, {sr(sB,2)} sc1")
    def publish():
        a(f"ds_read_b128 {v(T,4)}, {v(OR_)}")
        a(f"ds_read_b128 {v(T+4,4)}, {v(OR_)} offset:4096")
        a("s_waitcnt vmcnt(0) lgkmcnt(1)")
        a(f"global_store_dwordx4 {v(GST)}, {v(T,4)}, {sr(sB,2)} sc1")
        a("s_waitcnt lgkmcnt(0)")
        a(f"global_store_dwordx4 {v(GST+1)}, {v(T+4,4)}, {sr(sB,2)} sc1")
    a("L_xtop:")
    poll(PX, "x")
    stamp(0)
    a(f"""
    s_cmp_lg_u32 {sr(sFix)}, 0
    s_cbranch_scc1 L_xfix
    s_cmp_eq_u32 {sr(sL)}, {nlayers}
    s_cbranch_scc1 L_xupd
    L_xclr:
    """)
    clears()
    a("L_xupd:")
    a(f"s_add_u32 {sr(sB)}, {sr(sB)}, 0x200000")
    a(f"s_addc_u32 {sr(sB+1)}, {sr(sB+1)}, 0")
    for pc in range(2):
        for col in range(2):
            q = (pc*2 + col)*2
            r0 = RX + 4*pc + col; r1 = r0 + 2
            m = v(VM) if q == 0 else sr(sC64)
            a(f"v_fma_mix_f32 {v(S+2*q)}, {v(r0)}, {sr(sC64)}, {v(S+2*q)} op_sel_hi:[1,0,0]")
            a(f"v_fma_mix_f32 {v(S+2*q+1)}, {v(r0)}, {sr(sC64)}, {v(S+2*q+1)} op_sel:[1,0,0] op_sel_hi:[1,0,0]")
            a(f"v_fma_mix_f32 {v(S+2*q+2)}, {v(r1)}, {m}, {v(S+2*q+2)} op_sel:[1,0,0] op_sel_hi:[1,0,0]")
            a(f"v_fma_mix_f32 {v(S+2*q+3)}, {v(r1)}, {m}, {v(S+2*q+3)} op_sel_hi:[1,0,0]")
    a(f"s_cmp_eq_u32 {sr(sL)}, {nlayers}")
    a("s_cbranch_scc1 L_final")
    a("L_xstats:")
    sums(S, A)
    reduce_add(0)
    a("s_waitcnt lgkmcnt(0)")
    a("s_barrier")
    stamp(1)
    a(f"s_cmp_eq_u32 {sr(sL)}, 0")
    a("s_cbranch_scc1 L_first1")
    a("L_first1_ret:")
    a(f"ds_read_b128 {v(T,4)}, {v(SRD)}")
    a(f"ds_read_b128 {v(T+8,4)}, {v(SRD)} offset:64")
    a(f"ds_read_b128 {v(T+4,4)}, {v(SRD)} offset:16")
    a(f"ds_read_b128 {v(T+12,4)}, {v(SRD)} offset:80")
    T1, T2, T3, T3O = T, T+2, T+4, T+6
    WA, WB, MA, MB, RS, RD, K = T+16, T+18, T+20, T+22, T+24, T+26, T+28
    a("s_waitcnt lgkmcnt(2)")
    pk("add", T1, T1, T+8); pk("add", T2, T2, T+10)
    pk("fma", T1, T1, sr(sK16,2), CA2)
    pk("fma", WA, T2, sr(sK32,2), T1)
    pk("fma", WB, T2, sr(sK32,2), T1, mods="neg_lo:[1,0,0] neg_hi:[1,0,0]")
    a("s_waitcnt lgkmcnt(0)")
    pk("add", T3, T3, T+12); pk("add", T3O, T3O, T+14)
    pk("fma", MA, T3, sr(sK8,2), CA)
    pk("fma", MB, T3, sr(sK8,2), CA, mods="neg_lo:[0,0,1] neg_hi:[0,0,1]")
    pk("fma", WA, MA, MA, WA, mods="neg_lo:[1,0,0] neg_hi:[1,0,0]")
    pk("fma", WB, MB, MB, WB, mods="neg_lo:[1,0,0] neg_hi:[1,0,0]")
    for i in range(4): a(f"v_max_f32 {v(WA+i)}, {sr(sEPS)}, {v(WA+i)}")
    for i in range(4): a(f"v_rsq_f32 {v(WA+i)}, {v(WA+i)}")
    pk("add", RS, WA, WB)
    pk("add", RD, WA, WB, mods="neg_lo:[0,1] neg_hi:[0,1]")
    pk("mul", K, T3O, RS)
    pk("fma", K, CAO, RD, K)
    U = T + 32
    for q in range(8):
        pk("fma", U+2*q, RS, S+2*q, K, mods="neg_lo:[0,0,1] neg_hi:[0,0,1]")
    for q in range(8):
        pk("fma", U+2*q, RD, A+2*q, U+2*q)
    for q in range(8):
        pk("add", U+2*q, U+2*q, U+2*q, mods="op_sel:[0,1] op_sel_hi:[0,1] neg_hi:[0,1]")
    for q in range(8):
        a(f"v_cvt_pk_f16_f32 {v(T+q)}, {v(U+2*q)}, {v(U+2*q+1)}")
        a(f"ds_write_b16 {v(XW+q)}, {v(T+q)}")
        a(f"ds_write_b16_d16_hi {v(XW+q)}, {v(T+q)} offset:2048")
    a("s_waitcnt lgkmcnt(0)")
    a("s_barrier")
    stamp(2)
    D = T + 16
    for i, off in enumerate((0, 2048, 1024, 3072)):
        a(f"ds_read_b128 {v(T+4*i,4)}, {v(XR)} offset:{off}")
    for i in range(4):
        a(f"s_waitcnt lgkmcnt({3-i})")
        mfma(D + 8*i, T + 4*i, B1XC, "0")
        mfma(D + 8*i + 4, T + 4*i, B1XS, "0")
    BA = T; BB = T + 8
    P_ = T + 48
    for mt in range(2):
        pr, pi, qr, qi = D + 16*mt, D + 16*mt + 4, D + 16*mt + 8, D + 16*mt + 12
        for h in range(2):
            o = 2*h; tc = TC + 4*mt + o; ts = TS + 4*mt + o; qc = QC + 4*mt + o; qs = QS + 4*mt + o
            xr, xi = P_ + 4*h, P_ + 4*h + 2
            pk("mul", xr, pr+o, tc)
            pk("mul", xi, pi+o, tc)
            pk("fma", xr, pi+o, ts, xr)
            pk("fma", xi, pr+o, ts, xi, mods="neg_lo:[1,0,0] neg_hi:[1,0,0]")
            pk("fma", pr+o, qr+o, qc, xr)
            pk("fma", pi+o, qi+o, qc, xi)
            pk("fma", pr+o, qi+o, qs, pr+o)
            pk("fma", pi+o, qr+o, qs, pi+o, mods="neg_lo:[1,0,0] neg_hi:[1,0,0]")
            pk("fma", qr+o, xr, sr(sK2,2), pr+o, mods="neg_lo:[0,0,1] neg_hi:[0,0,1]")
            pk("fma", qi+o, xi, sr(sK2,2), pi+o, mods="neg_lo:[0,0,1] neg_hi:[0,0,1]")
        for r in range(4):
            a(f"v_cvt_pk_f16_f32 {v(BA+4*mt+r)}, {v(pr+r)}, {v(pi+r)}")
        for r in range(4):
            a(f"v_cvt_pk_f16_f32 {v(BB+4*mt+r)}, {v(qr+r)}, {v(qi+r)}")
    G = T + 48
    for mt in range(2):
        for i, (bs, ri) in enumerate(((BA,0),(BA,1),(BB,0),(BB,1))):
            mfma(G + 4*i, A2 + 8*mt + 4*ri, bs + 4*mt, "0" if mt == 0 else G + 4*i)
    for r in range(4):
        a(f"v_cvt_pk_f16_f32 {v(D+r)}, {v(G+r)}, {v(G+4+r)}")
    a(f"ds_write_b64 {v(XOA)}, {v(D,2)}")
    a(f"ds_write_b64 {v(XOA)}, {v(D+2,2)} offset:1024")
    for r in range(4):
        a(f"v_cvt_pk_f16_f32 {v(D+4+r)}, {v(G+8+r)}, -{v(G+12+r)}")
    a(f"ds_write_b64 {v(XOB)}, {v(D+4,2)}")
    a(f"ds_write_b64 {v(XOB)}, {v(D+6,2)} offset:1024")
    a("s_waitcnt lgkmcnt(0)")
    a("s_barrier")
    stamp(3)
    a(f"s_cmp_eq_u32 {sr(sFix)}, 2")
    a("s_cbranch_scc1 L_extra_y")
    publish()
    a(f"s_cmp_eq_u32 {sr(sL)}, 0")
    a("s_cbranch_scc1 L_first2")
    a("L_first2_ret:")
    a("s_waitcnt vmcnt(0)")
    stamp(4)
    poll(PY, "y")
    stamp(5)
    for pc in range(2):
        a(f"ds_write2st64_b32 {v(YW+2*pc)}, {v(RX+4*pc)}, {v(RX+4*pc+1)} offset1:16")
        a(f"ds_write2st64_b32 {v(YW+2*pc+1)}, {v(RX+4*pc+2)}, {v(RX+4*pc+3)} offset1:16")
    a(f"s_cmp_ge_u32 {sr(sL)}, {nlayers-1}")
    a("s_cbranch_scc1 L_ynoclr")
    clears()
    a("L_ynoclr:")
    a(f"s_add_u32 {sr(sB)}, {sr(sB)}, 0x200000")
    a(f"s_addc_u32 {sr(sB+1)}, {sr(sB+1)}, 0")
    a("s_waitcnt lgkmcnt(0)")
    a("s_barrier")
    for i, (mt, kh) in enumerate(((0,0),(0,1),(1,0),(1,1))):
        a(f"ds_read_b128 {v(T+4*i,4)}, {v(YR+kh)} offset:{2048*mt}")
    a(f"v_mov_b32 {v(T+48)}, 0")
    a(f"v_mbcnt_lo_u32_b32 {v(T+49)}, -1, 0")
    a(f"v_mbcnt_hi_u32_b32 {v(T+49)}, -1, {v(T+49)}")
    a(f"v_lshlrev_b32 {v(T+49)}, 2, {v(T+49)}")
    a(f"ds_write_b32 {v(T+49)}, {v(T+48)} offset:{ST}")
    DY = T + 16
    for i, (mt, kh) in enumerate(((0,0),(0,1),(1,0),(1,1))):
        a(f"s_waitcnt lgkmcnt({4-i})")
        for ri in range(2):
            d = DY + 8*mt + 4*ri
            mfma(d, T + 4*i, B1Y + 8*kh + 4*ri, "0" if kh == 0 else d)
    BY = T
    for mt in range(2):
        zr, zi = DY + 8*mt, DY + 8*mt + 4
        xr, xi = T + 32 + 8*mt, T + 36 + 8*mt
        for h in range(2):
            o = 2*h; tc = TC + 4*mt + o; ts = TS + 4*mt + o
            pk("mul", xr+o, zr+o, tc)
            pk("mul", xi+o, zi+o, tc)
            pk("fma", xr+o, zi+o, ts, xr+o)
            pk("fma", xi+o, zr+o, ts, xi+o, mods="neg_lo:[1,0,0] neg_hi:[1,0,0]")
        for r in range(4):
            a(f"v_cvt_pk_f16_f32 {v(BY+4*mt+r)}, {v(xr+r)}, {v(xi+r)}")
    GY = T + 48
    for mt in range(2):
        for c in range(2):
            for hf in range(2):
                d = GY + 8*c + 4*hf
                mfma(d, A2 + 16*hf + 8*mt + 4*c, BY + 4*mt, "0" if mt == 0 else d)
    for c in range(2):
        for r in range(4):
            a(f"v_cvt_pk_f16_f32 {v(T+16+4*c+r)}, {v(GY+8*c+r)}, {v(GY+8*c+4+r)}")
            a(f"ds_write_b32 {v(YO+4*c+r)}, {v(T+16+4*c+r)} offset:{OUT}")
    a("s_waitcnt lgkmcnt(0)")
    a("s_barrier")
    stamp(6)
    publish()
    flush_stamps([0,1,2,3,4,5,6], lambda k: k)
    a(f"s_add_u32 {sr(sL)}, {sr(sL)}, 1")
    a("s_waitcnt vmcnt(0)")
    a("s_branch L_xtop")
    a(f"""
    L_extra_y:
    s_add_u32 {sr(sB)}, {sr(sB)}, 0x200000
    s_addc_u32 {sr(sB+1)}, {sr(sB+1)}, 0
    s_add_u32 {sr(sL)}, {sr(sL)}, 1
    s_barrier
    s_barrier
    s_branch L_xtop
    """)
    a(f"""
    L_xfix:
    s_cmp_eq_u32 {sr(sFix)}, 2
    s_cbranch_scc1 L_xfix2
    s_mov_b64 exec, {sr(sM5,2)}
    """)
    for pc in range(2):
        for col in range(2):
            r0 = RX + 4*pc + col
            a(f"v_alignbit_b32 {v(r0+2)}, {v(r0)}, {v(r0)}, 16")
    a(f"""
    s_mov_b64 exec, -1
    s_cmp_eq_u32 {sr(sL)}, {nlayers}
    s_cbranch_scc1 L_xupd
    s_branch L_xclr
    L_xfix2:
    """)
    for pc in range(2):
        for col in range(2):
            r0 = RX + 4*pc + col
            a(f"v_mov_b32 {v(r0)}, {v(r0+2)}")
    a("s_branch L_xupd")
    a("L_first1:")
    a(f"ds_read_b128 {v(T,4)}, {v(SRD)} offset:256")
    a(f"ds_read_b128 {v(T+8,4)}, {v(SRD)} offset:{256+64}")
    a(f"ds_read_b128 {v(T+4,4)}, {v(SRD)} offset:{256+16}")
    a(f"ds_read_b128 {v(T+12,4)}, {v(SRD)} offset:{256+80}")
    a(f"""
    s_cmp_lg_u32 {sr(sWV)}, 0
    s_cbranch_scc1 L_first1b
    s_lshl_b32 {sr(sT0)}, s2, 4
    v_mov_b32 {v(T+16)}, {sr(sT0)}
    v_mov_b32 {v(T+17)}, {sr(sTag)}
    s_mov_b64 exec, 1
    global_store_dword {v(T+16)}, {v(T+17)}, {sr(sFB,2)} sc1
    s_mov_b64 exec, -1
    L_first1b:
    s_waitcnt lgkmcnt(0)
    """)
    pk("add", T, T, T+8); pk("add", T+4, T+4, T+12); pk("add", CAO, T+6, T+14)
    pk("fma", CA2, T, sr(sK16,2), sr(sEpsP,2)) if False else None
    a(f"v_mov_b32 {v(CA2)}, {sr(sEPS)}")
    a(f"v_mov_b32 {v(CA2+1)}, {sr(sEPS)}")
    pk("fma", CA2, T, sr(sK16,2), CA2)
    pk("mul", CA, T+4, sr(sK8,2))
    a("s_branch L_first1_ret")
    a(f"""
    L_first2:
    s_mov_b32 {sr(sCnt)}, 0
    L_fpoll:
    global_load_dword {v(FL+1)}, {v(FL)}, {sr(sFB,2)} sc1
    global_load_dword {v(FL+2)}, {v(FL)}, {sr(sFB,2)} offset:2048 sc1
    s_waitcnt vmcnt(0)
    v_cmp_ne_u32 vcc, {sr(sTag)}, {v(FL+1)}
    v_cmp_ne_u32 {sr(sEx,2)}, {sr(sTag)}, {v(FL+2)}
    s_or_b64 vcc, vcc, {sr(sEx,2)}
    s_cbranch_scc0 L_first2_ret
    s_add_u32 {sr(sCnt)}, {sr(sCnt)}, 1
    s_cmp_lt_u32 {sr(sCnt)}, 0x8000
    s_cbranch_scc1 L_fpoll
    s_branch L_first2_ret
    """)
    a("L_final:")
    for q in range(8):
        pk("add", T+16+2*q, S+2*q, A+2*q)
        pk("add", T+32+2*q, S+2*q, A+2*q, mods="neg_lo:[0,1] neg_hi:[0,1]")
        a(f"v_cvt_pk_bf16_f32 {v(T+q)}, {v(T+16+2*q)}, {v(T+16+2*q+1)}")
        a(f"v_cvt_pk_bf16_f32 {v(T+8+q)}, {v(T+32+2*q)}, {v(T+32+2*q+1)}")
        a(f"ds_write_b16 {v(IOA+q)}, {v(T+q)}")
        a(f"ds_write_b16_d16_hi {v(IOA+q)}, {v(T+q)} offset:{IOROW}")
        a(f"ds_write_b16 {v(ioneg(q))}, {v(T+8+q)} offset:{3*IOROW}")
        a(f"ds_write_b16_d16_hi {v(ioneg(q))}, {v(T+8+q)} offset:{2*IOROW}")
    a("s_waitcnt lgkmcnt(0)")
    a("s_barrier")
    for i in range(4):
        a(f"ds_read_b128 {v(T+4*i,4)}, {v(IOL)} offset:{i*IOROW}")
    a("s_waitcnt lgkmcnt(3)")
    a(f"global_store_dwordx4 {v(IOG)}, {v(T,4)}, {sr(sO,2)}")
    a("s_waitcnt lgkmcnt(2)")
    a(f"global_store_dwordx4 {v(IOG+1)}, {v(T+4,4)}, {sr(sO,2)}")
    a(f"""
    s_and_b32 {sr(sT2)}, {sr(sA)}, 511
    s_cmp_eq_u32 {sr(sT2)}, 0
    s_cbranch_scc1 L_fin2
    s_waitcnt lgkmcnt(1)
    global_store_dwordx4 {v(IOG+2)}, {v(T+8,4)}, {sr(sO,2)}
    s_waitcnt lgkmcnt(0)
    global_store_dwordx4 {v(IOG+3)}, {v(T+12,4)}, {sr(sO,2)}
    L_fin2:
    s_cmp_eq_u32 {sr(sFix)}, 2
    s_cbranch_scc0 L_fin3
    s_cmp_eq_u32 {sr(sWV)}, 4
    s_cbranch_scc0 L_fin3
    v_mov_b32 {v(T+20)}, {hex(EPO-FLG)}
    v_mov_b32 {v(T+21)}, {sr(sTag)}
    s_mov_b64 exec, 1
    global_store_dword {v(T+20)}, {v(T+21)}, {sr(sFB,2)} sc1
    s_mov_b64 exec, -1
    L_fin3:
    """)
    if stamps:
        stamp(1)
        a("s_waitcnt vmcnt(0)")
        stamp(2)
        flush_stamps([0,1,2], lambda k: k)
        a(f"""
        s_cmp_lg_u32 {sr(sWV)}, 0
        s_cbranch_scc1 L_end
        s_add_u32 {sr(sB)}, {sr(sW)}, {hex(STAMP)}
        s_addc_u32 {sr(sB+1)}, {sr(sW+1)}, 0
        s_lshl_b32 {sr(sT0)}, s2, 8
        v_lshlrev_b32 {v(T)}, 2, v0
        v_add_u32 {v(T)}, {sr(sT0)}, {v(T)}
        global_store_dword {v(T)}, {v(STV)}, {sr(sB,2)}
        """)
    a("L_end:")
    a("s_endpgm")
    body = hz.fix(a.text())
    return wrap(body + "\n", 256, 384, LDS, T + NT, 64)

if __name__ == "__main__":
    open("k1.s", "w").write(gen())
    open("k1s.s", "w").write(gen(stamps=True))
    print("ok")
```

```python
import sys, struct
from gcommon import *
from maps import *
import hz

def f2u(x): return struct.unpack('<I', struct.pack('<f', x))[0]
def fh(x): return hex(f2u(x))

XIN = 0; XAREA = 4128
YIN = 12416
OUT = YIN + 8192
JUNK = OUT + 8192
ST = JUNK + 2560
IO = ST + 512
IOAREA = 9280; IOROW = 2304
LDS = IO + 3 * IOAREA
assert YIN % 128 == 0 and OUT % 16 == 0 and ST % 16 == 0 and IO % 16 == 0
FLG = 0x3000000; EPO = 0x3010000; STAMP = 0x4000000

class RA:
    def __init__(s, start): s.n = start; s.names = {}
    def __call__(s, name, cnt=1, align=1):
        s.n = (s.n + align - 1) // align * align
        r = s.n; s.n += cnt; s.names[name] = r; return r
def v(r, n=1): return f"v{r}" if n == 1 else f"v[{r}:{r+n-1}]"
def sr(r, n=1): return f"s{r}" if n == 1 else f"s[{r}:{r+n-1}]"

def runs(m):
    m = sorted(m); out = []
    for s_, d in m:
        if out and out[-1][0] + out[-1][2] == s_ and out[-1][1] + out[-1][2] == d: out[-1][2] += 1
        else: out.append([s_, d, 1])
    return out

def gen(stamps=False, nlayers=4, dbg=None):
    a = Asm()
    R = RA(1)
    TC = R('TC', 8, 2); TS = R('TS', 8, 2); QC = R('QC', 8, 2); QS = R('QS', 8, 2)
    B1XC = R('B1XC', 4, 2); B1XS = R('B1XS', 4, 2)
    B1Y = R('B1Y', 16, 2)
    A2 = R('A2', 32, 2)
    S = R('S', 16, 2); A = R('A', 16, 2)
    CA2 = R('CA2', 2, 2); CA = R('CA', 2, 2); CAO = R('CAO', 2, 2); PAR = R('PAR', 2, 2)
    VM = PAR + 1
    SENT = R('SENT', 4, 2)
    XW = R('XW', 8); XR = R('XR'); XOA = R('XOA'); XOB = R('XOB'); OR_ = R('OR')
    GST = R('GST', 4); PX = R('PX', 2); PY = R('PY', 2); YW = R('YW', 4); YR = R('YR', 2); YO = R('YO', 8)
    SA = R('SA'); SRD = R('SRD')
    IOA = R('IOA', 8); ION = R('ION', 2); IOL = R('IOL'); IOG = R('IOG', 4)
    FL = R('FL', 3)
    STV = R('STV')
    T = R('T', 0, 4)
    T = (R.n + 3) // 4 * 4
    NT = 64
    assert T + NT <= 256, T + NT
    sX, sO, sW = 4, 6, 8
    sB = 10; sWV = 12; sA = 13; sL = 14; sFix = 15; sCnt = 16; sTag = 17; sC64 = 18
    sEPS = 19; sK16 = 20; sK32 = 22; sK8 = 24; sK2 = 26; sFB = 28; sT0 = 30; sT1 = 31; sT2 = 32; sT3 = 33
    sMS = 34; sM5 = 36; sEx = 38; sEpsP = 40; sSt = 42
    nst = [0]
    def stamp(k):
        if stamps: a(f"s_memrealtime {sr(sSt + 2*k, 2)}")
    def flush_stamps(ks, basefn):
        if not stamps: return
        a("s_waitcnt lgkmcnt(0)")
        for k in ks:
            a(f"s_lshl_b32 {sr(sT0)}, {sr(sL)}, 3")
            a(f"s_add_u32 m0, {sr(sT0)}, {basefn(k)}")
            a(f"v_writelane_b32 {v(STV)}, {sr(sSt + 2*k)}, m0")
    def vbm(dst, src, m, tmp, shift=0, first=True):
        for s_, d, w in runs(m):
            if first:
                if s_ == 0 and d + shift == 0: a(f"v_and_b32 {v(dst)}, {(1<<w)-1}, {v(src)}")
                else:
                    a(f"v_bfe_u32 {v(dst)}, {v(src)}, {s_}, {w}")
                    if d + shift: a(f"v_lshlrev_b32 {v(dst)}, {d+shift}, {v(dst)}")
                first = False
            else:
                a(f"v_bfe_u32 {v(tmp)}, {v(src)}, {s_}, {w}")
                a(f"v_lshl_or_b32 {v(dst)}, {v(tmp)}, {d+shift}, {v(dst)}")
    def sbm(dst, src, m, tmp, shift=0):
        first = True
        for s_, d, w in runs(m):
            t = dst if first else tmp
            a(f"s_bfe_u32 {sr(t)}, {sr(src)}, {hex((w << 16) | s_)}")
            if d + shift: a(f"s_lshl_b32 {sr(t)}, {sr(t)}, {d+shift}")
            if not first: a(f"s_or_b32 {sr(dst)}, {sr(dst)}, {sr(tmp)}")
            first = False
    def pk(op, d, *srcs, mods=""):
        a(f"v_pk_{op}_f32 {v(d,2)}, " + ", ".join(x if isinstance(x, str) else v(x, 2) for x in srcs) + (" " + mods if mods else ""))
    def mfma(d, x, y, c):
        a(f"v_mfma_f32_16x16x32_f16 {v(d,4)}, {v(x,4)}, {v(y,4)}, {c if isinstance(c,str) else v(c,4)}")
    t0, t1, t2, t3, t4, t5, t6, t7 = [T + 48 + i for i in range(8)]
    TV = T + 56; LN = T + 57; EB = T + 58; GI = T + 59; FE = T + 60; FB = T + 61; TT = T + 62; TU = T + 63

    a(f"""
    s_cmp_ge_u32 s2, 256
    s_cbranch_scc1 L_end
    s_load_dwordx2 {sr(sX,2)}, s[0:1], 0
    s_load_dwordx2 {sr(sO,2)}, s[0:1], 80
    s_load_dwordx2 {sr(sW,2)}, s[0:1], 96
    v_lshrrev_b32 {v(t0)}, 6, v0
    v_readfirstlane_b32 {sr(sWV)}, {v(t0)}
    s_mov_b32 {sr(sFix)}, 0
    s_cmp_eq_u32 s2, 0
    s_cselect_b32 {sr(sFix)}, 1, 0
    s_cmp_lt_u32 {sr(sWV)}, 4
    s_cbranch_scc1 L_main0
    s_cmp_lg_u32 s2, 0
    s_cbranch_scc1 L_end
    s_mov_b32 {sr(sFix)}, 2
    L_main0:
    """)
    stamp(0)
    sbm(sA, 2, A_OF_W, sT0)
    a(f"""
    s_lshr_b32 {sr(sT1)}, {sr(sWV)}, 1
    s_or_b32 {sr(sA)}, {sr(sA)}, {sr(sT1)}
    s_cmp_eq_u32 {sr(sFix)}, 2
    s_cselect_b32 {sr(sA)}, 512, {sr(sA)}
    v_and_b32 {v(t0)}, 127, v0
    v_lshlrev_b32 {v(t1)}, 4, {v(t0)}
    s_lshl_b32 {sr(sT0)}, {sr(sA)}, 11
    v_add_u32 {v(IOG)}, {sr(sT0)}, {v(t1)}
    v_add_u32 {v(IOG+1)}, {hex(1024*2048)}, {v(IOG)}
    s_sub_u32 {sr(sT2)}, {hex(1024*2048)}, {sr(sT0)}
    v_add_u32 {v(IOG+2)}, {sr(sT2)}, {v(t1)}
    s_sub_u32 {sr(sT2)}, {hex(2048*2048)}, {sr(sT0)}
    s_and_b32 {sr(sT2)}, {sr(sT2)}, {hex(2048*2048-1)}
    v_add_u32 {v(IOG+3)}, {sr(sT2)}, {v(t1)}
    """)
    a(f"""
    v_and_b32 {v(t2)}, 255, v0
    v_lshrrev_b32 {v(t3)}, 4, {v(t2)}
    v_lshlrev_b32 {v(GST)}, 16, {v(t3)}
    v_and_b32 {v(t3)}, 15, v0
    v_lshl_or_b32 {v(GST)}, {v(t3)}, 4, {v(GST)}
    s_lshl_b32 {sr(sT2)}, s2, 8
    v_add_u32 {v(GST)}, {sr(sT2)}, {v(GST)}
    v_add_u32 {v(GST+1)}, 0x100000, {v(GST)}
    v_add_u32 {v(GST+2)}, 0x400000, {v(GST)}
    v_add_u32 {v(GST+3)}, 0x500000, {v(GST)}
    v_add_u32 {v(t4)}, 0x200000, {v(GST)}
    v_add_u32 {v(t5)}, 0x300000, {v(GST)}
    v_mov_b32 {v(SENT)}, -1
    v_mov_b32 {v(SENT+1)}, -1
    v_mov_b32 {v(SENT+2)}, -1
    v_mov_b32 {v(SENT+3)}, -1
    s_waitcnt lgkmcnt(0)
    """)
    for i in range(4):
        a(f"global_load_dwordx4 {v(T+4*i,4)}, {v(IOG+i)}, {sr(sX,2)}")
    a(f"""
    s_mov_b32 {sr(sB)}, {sr(sW)}
    s_mov_b32 {sr(sB+1)}, {sr(sW+1)}
    s_add_u32 {sr(sFB)}, {sr(sW)}, {hex(FLG)}
    s_addc_u32 {sr(sFB+1)}, {sr(sW+1)}, 0
    s_load_dword {sr(sTag)}, {sr(sFB,2)}, {hex(EPO-FLG)}
    s_cmp_eq_u32 {sr(sFix)}, 2
    s_cbranch_scc1 L_noclr0
    global_store_dwordx4 {v(GST)}, {v(SENT,4)}, {sr(sB,2)} sc1
    global_store_dwordx4 {v(GST+1)}, {v(SENT,4)}, {sr(sB,2)} sc1
    global_store_dwordx4 {v(t4)}, {v(SENT,4)}, {sr(sB,2)} sc1
    global_store_dwordx4 {v(t5)}, {v(SENT,4)}, {sr(sB,2)} sc1
    L_noclr0:
    """)
    a(f"""
    s_mov_b32 {sr(sC64)}, {fh(64.0)}
    s_mov_b32 {sr(sEPS)}, {fh(1e-5*16384.0)}
    s_mov_b32 {sr(sEpsP)}, {fh(1e-5*16384.0)}
    s_mov_b32 {sr(sEpsP+1)}, {fh(1e-5*16384.0)}
    s_mov_b32 {sr(sK16)}, {fh(16.0)}
    s_mov_b32 {sr(sK16+1)}, {fh(16.0)}
    s_mov_b32 {sr(sK32)}, {fh(32.0)}
    s_mov_b32 {sr(sK32+1)}, {fh(32.0)}
    s_mov_b32 {sr(sK8)}, {fh(0.125)}
    s_mov_b32 {sr(sK8+1)}, {fh(0.125)}
    s_mov_b32 {sr(sK2)}, {fh(2.0)}
    s_mov_b32 {sr(sK2+1)}, {fh(2.0)}
    s_mov_b32 {sr(sMS)}, 0x03030303
    s_mov_b32 {sr(sMS+1)}, 0x03030303
    s_mov_b32 {sr(sM5)}, 0x55555555
    s_mov_b32 {sr(sM5+1)}, 0x55555555
    s_mov_b32 {sr(sL)}, 0
    v_mov_b32 {v(STV)}, 0
    """)
    a(f"""
    v_mov_b32 {v(t6)}, 0
    v_and_b32 {v(t7)}, 127, v0
    v_lshlrev_b32 {v(t7)}, 2, {v(t7)}
    ds_write_b32 {v(t7)}, {v(t6)} offset:{ST}
    """)
    a(f"""
    v_and_b32 {v(LN)}, 63, v0
    v_mov_b32 {v(TV)}, v0
    v_and_b32 {v(GI)}, 1, v0
    s_cmp_eq_u32 {sr(sFix)}, 2
    s_cbranch_scc0 L_tv
    v_and_b32 {v(TV)}, 127, v0
    v_lshlrev_b32 {v(TV)}, 1, {v(TV)}
    v_mov_b32 {v(GI)}, 2
    L_tv:
    """)
    a(f"""
    s_lshr_b32 {sr(sT1)}, {sr(sWV)}, 1
    s_mul_i32 {sr(sT2)}, {sr(sT1)}, {IOAREA}
    s_add_u32 {sr(sT2)}, {sr(sT2)}, {IO}
    v_lshrrev_b32 {v(t1)}, 3, {v(t0)}
    v_add_u32 {v(t1)}, {v(t1)}, {v(t0)}
    v_lshlrev_b32 {v(IOL)}, 4, {v(t1)}
    v_add_u32 {v(IOL)}, {sr(sT2)}, {v(IOL)}
    """)
    vbm(EB, TV, XE_OF_T, TT)
    a(f"""
    v_bfe_u32 {v(t0)}, {v(TV)}, 1, 1
    v_cvt_f32_u32 {v(PAR)}, {v(t0)}
    v_mul_f32 {v(PAR)}, {fh(1.0/512)}, {v(PAR)}
    v_cmp_eq_u32 vcc, 0, {v(EB)}
    v_mov_b32 {v(VM)}, {sr(sC64)}
    v_cndmask_b32 {v(VM)}, {v(VM)}, 0, vcc
    v_mul_u32_u24 {v(t6)}, {XAREA}, {v(GI)}
    v_mul_u32_u24 {v(t7)}, {IOAREA}, {v(GI)}
    v_add_u32 {v(t7)}, {IO}, {v(t7)}
    """)
    if XIN: a(f"v_add_u32 {v(t6)}, {XIN}, {v(t6)}")
    def io_of(dst, d):
        a(f"v_lshrrev_b32 {v(TT)}, 6, {v(d)}")
        a(f"v_lshl_add_u32 {v(dst)}, {v(TT)}, 4, {v(t7)}")
        a(f"v_lshl_add_u32 {v(dst)}, {v(d)}, 1, {v(dst)}")
    def xin_of(dst, d):
        a(f"v_and_b32 {v(TT)}, 31, {v(d)}")
        a(f"v_lshl_add_u32 {v(dst)}, {v(TT)}, 6, {v(t6)}")
        a(f"v_lshrrev_b32 {v(TT)}, 7, {v(d)}")
        a(f"v_xor_b32 {v(TT)}, {v(TT)}, {v(d)}")
        a(f"v_bfe_u32 {v(TT)}, {v(TT)}, 1, 2")
        a(f"v_lshl_add_u32 {v(dst)}, {v(TT)}, 4, {v(dst)}")
        a(f"v_bfe_u32 {v(TT)}, {v(d)}, 5, 3")
        a(f"v_lshl_add_u32 {v(dst)}, {v(TT)}, 1, {v(dst)}")
    for sl in range(4):
        off = 32 * (sl & 1) + 256 * (sl >> 1)
        if sl == 0:
            a(f"v_mov_b32 {v(t1)}, 512")
            a(f"v_cndmask_b32 {v(t0)}, {v(EB)}, {v(t1)}, vcc")
        else:
            a(f"v_add_u32 {v(t0)}, {off}, {v(EB)}")
        a(f"v_sub_u32 {v(t1)}, {1024 - off}, {v(EB)}")
        a(f"v_and_b32 {v(t1)}, 1023, {v(t1)}")
        io_of(IOA + 2*sl, t0); io_of(IOA + 2*sl + 1, t1)
        xin_of(XW + 2*sl, t0); xin_of(XW + 2*sl + 1, t1)
    a(f"v_cndmask_b32 {v(ION)}, {v(IOA+1)}, {v(IOA)}, vcc")
    a(f"v_cndmask_b32 {v(ION+1)}, {v(IOA)}, {v(IOA+1)}, vcc")
    def ioneg(q):
        return ION + q if q < 2 else IOA + (q ^ 1)
    vbm(SA, LN, [(3,0),(4,1),(5,2)], TT, shift=2)
    a(f"""
    v_and_b32 {v(t0)}, 1, v0
    s_lshr_b32 {sr(sT1)}, {sr(sWV)}, 1
    s_lshl_b32 {sr(sT2)}, {sr(sT1)}, 6
    s_add_u32 {sr(sT2)}, {sr(sT2)}, {ST}
    s_cmp_eq_u32 {sr(sFix)}, 2
    s_cselect_b32 {sr(sT3)}, 6, 5
    v_lshlrev_b32 {v(t1)}, {sr(sT3)}, {v(t0)}
    v_add3_u32 {v(SA)}, {v(SA)}, {v(t1)}, {sr(sT2)}
    v_lshlrev_b32 {v(SRD)}, 5, {v(GI)}
    v_lshlrev_b32 {v(t1)}, 5, {v(GI)}
    v_and_b32 {v(t1)}, 64, {v(t1)}
    v_add_u32 {v(SRD)}, {v(SRD)}, {v(t1)}
    """)
    a(f"v_add_u32 {v(SRD)}, {ST}, {v(SRD)}")
    a(f"""
    s_mul_i32 {sr(sT2)}, {sr(sT1)}, {XAREA}
    s_add_u32 {sr(sT2)}, {sr(sT2)}, {XIN}
    v_and_b32 {v(t0)}, 15, v0
    v_lshrrev_b32 {v(t1)}, 3, {v(LN)}
    v_xor_b32 {v(t1)}, {v(t1)}, {v(LN)}
    v_bfe_u32 {v(t1)}, {v(t1)}, 1, 2
    v_lshlrev_b32 {v(XR)}, 6, {v(t0)}
    v_lshl_add_u32 {v(XR)}, {v(t1)}, 4, {v(XR)}
    v_add_u32 {v(XR)}, {sr(sT2)}, {v(XR)}
    """)
    a(f"""
    s_and_b32 {sr(sT3)}, {sr(sWV)}, 1
    s_lshl_b32 {sr(sT3)}, {sr(sT3)}, 4
    v_add_u32 {v(t1)}, {sr(sT3)}, {v(t0)}
    v_cvt_f32_u32 {v(FE)}, {v(t1)}
    v_lshrrev_b32 {v(t2)}, 4, {v(LN)}
    v_cvt_f32_u32 {v(FB)}, {v(t2)}
    v_mul_f32 {v(t3)}, {fh(1.0/1024)}, {v(FE)}
    v_mul_f32 {v(t4)}, 4.0, {v(FB)}
    v_mul_f32 {v(t4)}, {v(t4)}, {v(t3)}
    v_cvt_f32_u32 {v(t5)}, {sr(sA)}
    v_mov_b32 {v(t6)}, {fh(-0.25)}
    v_fmac_f32 {v(t6)}, {fh(1.0/2048)}, {v(t5)}
    """)
    for mt in range(2):
        for r in range(4):
            i = 4*mt + r
            a(f"v_fmamk_f32 {v(TT)}, {v(t3)}, {fh(16.0*mt + r)}, {v(t4)}")
            a(f"v_add_f32 {v(TU)}, {v(TT)}, {v(t6)}")
            a(f"v_cos_f32 {v(TC+i)}, {v(TT)}")
            a(f"v_sin_f32 {v(TS+i)}, {v(TT)}")
            a(f"v_cos_f32 {v(QC+i)}, {v(TU)}")
            a(f"v_sin_f32 {v(QS+i)}, {v(TU)}")
    a(f"""
    v_mul_f32 {v(t3)}, {fh(1.0/32)}, {v(FE)}
    v_mul_f32 {v(t4)}, {fh(8.0)}, {v(FB)}
    v_mul_f32 {v(t4)}, {v(t4)}, {v(t3)}
    """)
    for jp in range(4):
        a(f"v_fmamk_f32 {v(TT)}, {v(t3)}, {fh(2.0*jp)}, {v(t4)}")
        a(f"v_fmamk_f32 {v(TU)}, {v(t3)}, {fh(2.0*jp+1)}, {v(t4)}")
        a(f"v_cos_f32 {v(t0)}, {v(TT)}")
        a(f"v_cos_f32 {v(t1)}, {v(TU)}")
        a(f"v_sin_f32 {v(t2)}, {v(TT)}")
        a(f"v_sin_f32 {v(t5)}, {v(TU)}")
        a(f"v_cvt_pk_f16_f32 {v(B1XC+jp)}, {v(t0)}, {v(t1)}")
        a(f"v_cvt_pk_f16_f32 {v(B1XS+jp)}, -{v(t2)}, -{v(t5)}")
    def dft_tab(base, fsrc, hi=None):
        a(f"v_mul_f32 {v(t3)}, {fh(1.0/32)}, {v(fsrc)}")
        a(f"v_mul_f32 {v(t4)}, 4.0, {v(FB)}")
        a(f"v_mul_f32 {v(t4)}, {v(t4)}, {v(t3)}")
        for k in range(2):
            for jj in range(4):
                a(f"v_fmamk_f32 {v(TT)}, {v(t3)}, {fh(16.0*k + jj)}, {v(t4)}")
                a(f"v_cos_f32 {v(t0)}, {v(TT)}")
                a(f"v_sin_f32 {v(t1)}, {v(TT)}")
                a(f"v_cvt_pk_f16_f32 {v(base+8*k+jj)}, {v(t0)}, {v(t1)}")
                a(f"v_cvt_pk_f16_f32 {v(base+8*k+4+jj)}, -{v(t1)}, {v(t0)}")
                if hi is not None:
                    if jj & 1:
                        a(f"v_cvt_pk_f16_f32 {v(hi+8*k+jj)}, -{v(t0)}, -{v(t1)}")
                        a(f"v_cvt_pk_f16_f32 {v(hi+8*k+4+jj)}, {v(t1)}, -{v(t0)}")
                    else:
                        a(f"v_mov_b32 {v(hi+8*k+jj)}, {v(base+8*k+jj)}")
                        a(f"v_mov_b32 {v(hi+8*k+4+jj)}, {v(base+8*k+4+jj)}")
    dft_tab(B1Y, FE)
    vbm(t2, LN, [(0,0),(1,1),(2,3),(3,2)], TT)
    a(f"v_cvt_f32_u32 {v(FE)}, {v(t2)}")
    dft_tab(A2, FE, A2 + 16)
    vbm(XOA, LN, [(0,1),(1,2),(3,3),(2,4),(5,7),(4,8)], TT, shift=4)
    a(f"""
    v_bfe_u32 {v(t0)}, {v(LN)}, 2, 1
    s_bfe_u32 {sr(sT1)}, {sr(sWV)}, 0x10001
    v_xor_b32 {v(t0)}, {sr(sT1)}, {v(t0)}
    v_lshl_or_b32 {v(XOA)}, {v(t0)}, 4, {v(XOA)}
    s_and_b32 {sr(sT3)}, {sr(sWV)}, 1
    s_lshl_b32 {sr(sT3)}, {sr(sT3)}, 9
    s_add_u32 {sr(sT3)}, {sr(sT3)}, {OUT}
    v_add_u32 {v(XOA)}, {sr(sT3)}, {v(XOA)}
    v_add_u32 {v(XOB)}, 8, {v(XOA)}
    s_and_b32 {sr(sT2)}, {sr(sA)}, 511
    s_cmp_lg_u32 {sr(sT2)}, 0
    s_cbranch_scc1 L_xo
    s_cmp_eq_u32 {sr(sFix)}, 2
    s_cbranch_scc0 L_xo1
    v_mov_b32 {v(XOA)}, {v(XOB)}
    L_xo1:
    v_lshlrev_b32 {v(XOB)}, 3, {v(LN)}
    v_add_u32 {v(XOB)}, {JUNK}, {v(XOB)}
    L_xo:
    """)
    a(f"""
    v_and_b32 {v(t0)}, 255, v0
    v_bfe_u32 {v(t1)}, v0, 4, 1
    v_xor_b32 {v(t0)}, {v(t0)}, {v(t1)}
    v_lshlrev_b32 {v(OR_)}, 4, {v(t0)}
    v_add_u32 {v(OR_)}, {OUT}, {v(OR_)}
    """)
    sbm(sT2, 2, [(0,16),(1,17),(2,18),(6,19),(7,20),(3,5),(4,6),(5,7)], sT0)
    vbm(PX, TV, XC_OF_T, TT, shift=8)
    a(f"v_and_b32 {v(t0)}, 1, {v(TV)}")
    a(f"v_lshl_or_b32 {v(PX)}, {v(t0)}, 4, {v(PX)}")
    a(f"v_add_u32 {v(PX)}, {sr(sT2)}, {v(PX)}")
    a(f"v_add_u32 {v(PX+1)}, 0x8000, {v(PX)}")
    vbm(PY, 0, YW_OF_T, TT, shift=8)
    a(f"v_lshrrev_b32 {v(FL)}, 4, {v(PY)}")
    a(f"v_and_b32 {v(t0)}, 1, v0")
    a(f"v_lshl_or_b32 {v(PY)}, {v(t0)}, 4, {v(PY)}")
    a(f"v_add_u32 {v(PY)}, {sr(sT2)}, {v(PY)}")
    a(f"v_add_u32 {v(PY+1)}, 0x8000, {v(PY)}")
    def yin_of(dst, s_):
        a(f"v_and_b32 {v(TT)}, 31, {v(s_)}")
        a(f"v_lshlrev_b32 {v(dst)}, 7, {v(TT)}")
        a(f"v_lshrrev_b32 {v(TT)}, 7, {v(s_)}")
        a(f"v_xor_b32 {v(TT)}, {v(TT)}, {v(s_)}")
        a(f"v_and_b32 {v(TT)}, 7, {v(TT)}")
        a(f"v_lshl_add_u32 {v(dst)}, {v(TT)}, 4, {v(dst)}")
        a(f"v_bfe_u32 {v(TT)}, {v(s_)}, 5, 2")
        a(f"v_lshl_add_u32 {v(dst)}, {v(TT)}, 2, {v(dst)}")
        a(f"v_add_u32 {v(dst)}, {YIN}, {v(dst)}")
    vbm(t0, 0, YA_OF_T, TT)
    yin_of(YW, t0)
    a(f"""
    v_sub_u32 {v(t1)}, 1024, {v(t0)}
    v_mov_b32 {v(t2)}, 512
    v_cmp_eq_u32 vcc, 0, {v(t0)}
    v_cndmask_b32 {v(t1)}, {v(t1)}, {v(t2)}, vcc
    """)
    yin_of(YW + 1, t1)
    a(f"v_add_u32 {v(t1)}, 256, {v(t0)}")
    yin_of(YW + 2, t1)
    a(f"v_sub_u32 {v(t1)}, 768, {v(t0)}")
    yin_of(YW + 3, t1)
    a(f"""
    s_lshr_b32 {sr(sT1)}, {sr(sWV)}, 1
    s_lshl_b32 {sr(sT2)}, {sr(sT1)}, 12
    s_add_u32 {sr(sT2)}, {sr(sT2)}, {YIN}
    v_and_b32 {v(t0)}, 15, v0
    v_lshrrev_b32 {v(t1)}, 4, {v(LN)}
    v_and_b32 {v(t2)}, 7, v0
    v_xor_b32 {v(t1)}, {v(t1)}, {v(t2)}
    v_lshlrev_b32 {v(YR)}, 7, {v(t0)}
    v_lshl_add_u32 {v(YR)}, {v(t1)}, 4, {v(YR)}
    v_add_u32 {v(YR)}, {sr(sT2)}, {v(YR)}
    v_xor_b32 {v(YR+1)}, 64, {v(YR)}
    """)
    vbm(t0, LN, [(0,1),(1,2),(2,3),(3,4),(5,8)], TT)
    a(f"""
    s_and_b32 {sr(sT3)}, {sr(sWV)}, 1
    s_lshl_b32 {sr(sT3)}, {sr(sT3)}, 5
    v_or_b32 {v(t0)}, {sr(sT3)}, {v(t0)}
    v_bfe_u32 {v(t1)}, {v(LN)}, 4, 1
    v_cmp_eq_u32 vcc, 1, {v(t1)}
    v_lshlrev_b32 {v(t1)}, 3, {v(t1)}
    s_lshl_b32 {sr(sT2)}, {sr(sT1)}, 2
    v_add_u32 {v(t1)}, {sr(sT2)}, {v(t1)}
    v_mov_b32 {v(t5)}, 1024
    v_mov_b32 {v(t6)}, {hex((-1024) & 0xffffffff)}
    v_cndmask_b32 {v(t5)}, {v(t5)}, {v(t6)}, vcc
    """)
    for c in range(2):
        a(f"v_or_b32 {v(t2)}, {c}, {v(t0)}")
        a(f"v_sub_u32 {v(t3)}, 0, {v(t2)}")
        a(f"v_cndmask_b32 {v(t2)}, {v(t2)}, {v(t3)}, vcc")
        vbm(t3, t2, POS_OF_A, TT, shift=4)
        a(f"v_bfe_u32 {v(TT)}, {v(t2)}, 1, 1")
        a(f"v_lshlrev_b32 {v(TT)}, 4, {v(TT)}")
        a(f"v_xor_b32 {v(t3)}, {v(t3)}, {v(TT)}")
        a(f"v_add_u32 {v(t3)}, {v(t3)}, {v(t1)}")
        for r in range(4):
            if r: a(f"v_add_u32 {v(t3)}, {v(t3)}, {v(t5)}")
            a(f"v_and_b32 {v(YO+4*c+r)}, 8191, {v(t3)}")
    stamp(1)
    a("s_cmp_eq_u32 %s, 2" % sr(sFix))
    a("s_cbranch_scc1 L_w0")
    a("s_waitcnt vmcnt(4)")
    a("s_branch L_w1")
    a("L_w0:")
    a("s_waitcnt vmcnt(0)")
    a("L_w1:")
    for i in range(4):
        a(f"ds_write_b128 {v(IOL)}, {v(T+4*i,4)} offset:{i*IOROW}")
    a("s_waitcnt lgkmcnt(0)")
    a("s_barrier")
    stamp(2)
    a(f"s_mul_i32 {sr(sTag)}, {sr(sTag)}, 0x9E3779B1")
    a(f"s_add_u32 {sr(sTag)}, {sr(sTag)}, 0x7F4A7C15")
    for q in range(8):
        a(f"ds_read_u16 {v(T+2*q)}, {v(IOA+q)}")
        a(f"ds_read_u16 {v(T+2*q+1)}, {v(IOA+q)} offset:{IOROW}")
        a(f"ds_read_u16 {v(T+16+2*q)}, {v(ioneg(q))} offset:{3*IOROW}")
        a(f"ds_read_u16 {v(T+16+2*q+1)}, {v(ioneg(q))} offset:{2*IOROW}")
    a(f"s_mov_b32 {sr(sT2)}, 0.5")
    a(f"s_mov_b32 {sr(sT3)}, 0.5")
    for q in range(8):
        a(f"s_waitcnt lgkmcnt({min(15, 4*(7-q))})")
        for x in (T+2*q, T+2*q+1, T+16+2*q, T+16+2*q+1):
            a(f"v_lshlrev_b32 {v(x)}, 16, {v(x)}")
        pk("mul", T+2*q, T+2*q, sr(sT2, 2))
        pk("fma", S+2*q, T+16+2*q, sr(sT2, 2), T+2*q)
        pk("fma", A+2*q, T+16+2*q, sr(sT2, 2), T+2*q, mods="neg_lo:[1,0,0] neg_hi:[1,0,0]")
    V = T
    def sums(X, Y):
        pk("mul", V, X, X)
        if Y is not None: pk("mul", V+2, X, Y)
        pk("add", V+4, X, X+2)
        for q in range(1, 8):
            pk("fma", V, X+2*q, X+2*q, V)
            if Y is not None: pk("fma", V+2, X+2*q, Y+2*q, V+2)
            if q >= 2: pk("add", V+4, V+4, X+2*q)
        pk("mul", V+6, V+4, PAR, mods="op_sel_hi:[1,0]")
    def reduce_add(off):
        for i in range(4):
            a(f"v_permlane32_swap_b32 {v(V+i)}, {v(V+4+i)}")
        pk("add", V, V, V+4); pk("add", V+2, V+2, V+6)
        a(f"v_permlane16_swap_b32 {v(V)}, {v(V+2)}")
        a(f"v_permlane16_swap_b32 {v(V+1)}, {v(V+3)}")
        pk("add", V, V, V+2)
        a(f"v_add_f32_dpp {v(V+4)}, {v(V)}, {v(V)} row_ror:8 row_mask:0xf bank_mask:0x3")
        a(f"v_add_f32_dpp {v(V+4)}, {v(V+1)}, {v(V+1)} row_ror:8 row_mask:0xf bank_mask:0xc")
        a(f"v_add_f32_dpp {v(V+5)}, {v(V+4)}, {v(V+4)} row_shl:4 row_mask:0xf bank_mask:0xf bound_ctrl:0")
        a(f"v_add_f32_dpp {v(V+6)}, {v(V+5)}, {v(V+5)} quad_perm:[2,3,0,1] row_mask:0xf bank_mask:0xf")
        a(f"s_mov_b64 exec, {sr(sMS,2)}")
        a(f"ds_add_f32 {v(SA)}, {v(V+6)}" + (f" offset:{off}" if off else ""))
        a("s_mov_b64 exec, -1")
    a(f"v_mov_b32 {v(V+2)}, 0")
    a(f"v_mov_b32 {v(V+3)}, 0")
    sums(A, None)
    reduce_add(256)
    a("s_waitcnt vmcnt(0)")
    stamp(3)
    flush_stamps([0,1,2,3], lambda k: 40 + k)
    a("s_branch L_xstats")

    RX = T + 8
    def poll(P, name):
        a(f"""
        s_mov_b32 {sr(sCnt)}, 0
        L_poll{name}:
        global_load_dwordx4 {v(RX,4)}, {v(P)}, {sr(sB,2)} sc1
        global_load_dwordx4 {v(RX+4,4)}, {v(P+1)}, {sr(sB,2)} sc1
        s_waitcnt vmcnt(0)
        v_max3_u32 {v(T)}, {v(RX)}, {v(RX+1)}, {v(RX+2)}
        v_max3_u32 {v(T+1)}, {v(RX+3)}, {v(RX+4)}, {v(RX+5)}
        v_max3_u32 {v(T)}, {v(T)}, {v(RX+6)}, {v(RX+7)}
        v_max_u32 {v(T)}, {v(T)}, {v(T+1)}
        v_cmp_eq_u32 vcc, -1, {v(T)}
        s_cbranch_vccz L_done{name}
        s_mov_b64 exec, vcc
        s_add_u32 {sr(sCnt)}, {sr(sCnt)}, 1
        s_cmp_lt_u32 {sr(sCnt)}, 0x8000
        s_cbranch_scc1 L_poll{name}
        L_done{name}:
        s_mov_b64 exec, -1
        """)
    def clears():
        a(f"global_store_dwordx4 {v(GST+2)}, {v(SENT,4)}, {sr(sB,2)} sc1")
        a(f"global_store_dwordx4 {v(GST+3)}, {v(SENT,4)}, {sr(sB,2)} sc1")
    def publish():
        a(f"ds_read_b128 {v(T,4)}, {v(OR_)}")
        a(f"ds_read_b128 {v(T+4,4)}, {v(OR_)} offset:4096")
        a("s_waitcnt vmcnt(0) lgkmcnt(1)")
        a(f"global_store_dwordx4 {v(GST)}, {v(T,4)}, {sr(sB,2)} sc1")
        a("s_waitcnt lgkmcnt(0)")
        a(f"global_store_dwordx4 {v(GST+1)}, {v(T+4,4)}, {sr(sB,2)} sc1")
    a("L_xtop:")
    poll(PX, "x")
    stamp(0)
    a(f"""
    s_cmp_lg_u32 {sr(sFix)}, 0
    s_cbranch_scc1 L_xfix
    s_cmp_eq_u32 {sr(sL)}, {nlayers}
    s_cbranch_scc1 L_xupd
    L_xclr:
    """)
    clears()
    a("L_xupd:")
    a(f"s_add_u32 {sr(sB)}, {sr(sB)}, 0x200000")
    a(f"s_addc_u32 {sr(sB+1)}, {sr(sB+1)}, 0")
    for pc in range(2):
        for col in range(2):
            q = (pc*2 + col)*2
            r0 = RX + 4*pc + col; r1 = r0 + 2
            m = v(VM) if q == 0 else sr(sC64)
            a(f"v_fma_mix_f32 {v(S+2*q)}, {v(r0)}, {sr(sC64)}, {v(S+2*q)} op_sel_hi:[1,0,0]")
            a(f"v_fma_mix_f32 {v(S+2*q+1)}, {v(r0)}, {sr(sC64)}, {v(S+2*q+1)} op_sel:[1,0,0] op_sel_hi:[1,0,0]")
            a(f"v_fma_mix_f32 {v(S+2*q+2)}, {v(r1)}, {m}, {v(S+2*q+2)} op_sel:[1,0,0] op_sel_hi:[1,0,0]")
            a(f"v_fma_mix_f32 {v(S+2*q+3)}, {v(r1)}, {m}, {v(S+2*q+3)} op_sel_hi:[1,0,0]")
    a(f"s_cmp_eq_u32 {sr(sL)}, {nlayers}")
    a("s_cbranch_scc1 L_final")
    a("L_xstats:")
    sums(S, A)
    reduce_add(0)
    a("s_waitcnt lgkmcnt(0)")
    a("s_barrier")
    stamp(1)
    a(f"s_cmp_eq_u32 {sr(sL)}, 0")
    a("s_cbranch_scc1 L_first1")
    a("L_first1_ret:")
    a(f"ds_read_b128 {v(T,4)}, {v(SRD)}")
    a(f"ds_read_b128 {v(T+8,4)}, {v(SRD)} offset:64")
    a(f"ds_read_b128 {v(T+4,4)}, {v(SRD)} offset:16")
    a(f"ds_read_b128 {v(T+12,4)}, {v(SRD)} offset:80")
    T1, T2, T3, T3O = T, T+2, T+4, T+6
    WA, WB, MA, MB, RS, RD, K = T+16, T+18, T+20, T+22, T+24, T+26, T+28
    a("s_waitcnt lgkmcnt(2)")
    pk("add", T1, T1, T+8); pk("add", T2, T2, T+10)
    pk("fma", T1, T1, sr(sK16,2), CA2)
    pk("fma", WA, T2, sr(sK32,2), T1)
    pk("fma", WB, T2, sr(sK32,2), T1, mods="neg_lo:[1,0,0] neg_hi:[1,0,0]")
    a("s_waitcnt lgkmcnt(0)")
    pk("add", T3, T3, T+12); pk("add", T3O, T3O, T+14)
    pk("fma", MA, T3, sr(sK8,2), CA)
    pk("fma", MB, T3, sr(sK8,2), CA, mods="neg_lo:[0,0,1] neg_hi:[0,0,1]")
    pk("fma", WA, MA, MA, WA, mods="neg_lo:[1,0,0] neg_hi:[1,0,0]")
    pk("fma", WB, MB, MB, WB, mods="neg_lo:[1,0,0] neg_hi:[1,0,0]")
    for i in range(4): a(f"v_max_f32 {v(WA+i)}, {sr(sEPS)}, {v(WA+i)}")
    for i in range(4): a(f"v_rsq_f32 {v(WA+i)}, {v(WA+i)}")
    pk("add", RS, WA, WB)
    pk("add", RD, WA, WB, mods="neg_lo:[0,1] neg_hi:[0,1]")
    pk("mul", K, T3O, RS)
    pk("fma", K, CAO, RD, K)
    U = T + 32
    for q in range(8):
        pk("fma", U+2*q, RS, S+2*q, K, mods="neg_lo:[0,0,1] neg_hi:[0,0,1]")
    for q in range(8):
        pk("fma", U+2*q, RD, A+2*q, U+2*q)
    for q in range(8):
        pk("add", U+2*q, U+2*q, U+2*q, mods="op_sel:[0,1] op_sel_hi:[0,1] neg_hi:[0,1]")
    for q in range(8):
        a(f"v_cvt_pk_f16_f32 {v(T+q)}, {v(U+2*q)}, {v(U+2*q+1)}")
        a(f"ds_write_b16 {v(XW+q)}, {v(T+q)}")
        a(f"ds_write_b16_d16_hi {v(XW+q)}, {v(T+q)} offset:2048")
    a("s_waitcnt lgkmcnt(0)")
    a("s_barrier")
    stamp(2)
    D = T + 16
    for i, off in enumerate((0, 2048, 1024, 3072)):
        a(f"ds_read_b128 {v(T+4*i,4)}, {v(XR)} offset:{off}")
    for i in range(4):
        a(f"s_waitcnt lgkmcnt({3-i})")
        mfma(D + 8*i, T + 4*i, B1XC, "0")
        mfma(D + 8*i + 4, T + 4*i, B1XS, "0")
    BA = T; BB = T + 8
    P_ = T + 48
    for mt in range(2):
        pr, pi, qr, qi = D + 16*mt, D + 16*mt + 4, D + 16*mt + 8, D + 16*mt + 12
        for h in range(2):
            o = 2*h; tc = TC + 4*mt + o; ts = TS + 4*mt + o; qc = QC + 4*mt + o; qs = QS + 4*mt + o
            xr, xi = P_ + 4*h, P_ + 4*h + 2
            pk("mul", xr, pr+o, tc)
            pk("mul", xi, pi+o, tc)
            pk("fma", xr, pi+o, ts, xr)
            pk("fma", xi, pr+o, ts, xi, mods="neg_lo:[1,0,0] neg_hi:[1,0,0]")
            pk("fma", pr+o, qr+o, qc, xr)
            pk("fma", pi+o, qi+o, qc, xi)
            pk("fma", pr+o, qi+o, qs, pr+o)
            pk("fma", pi+o, qr+o, qs, pi+o, mods="neg_lo:[1,0,0] neg_hi:[1,0,0]")
            pk("fma", qr+o, xr, sr(sK2,2), pr+o, mods="neg_lo:[0,0,1] neg_hi:[0,0,1]")
            pk("fma", qi+o, xi, sr(sK2,2), pi+o, mods="neg_lo:[0,0,1] neg_hi:[0,0,1]")
        for r in range(4):
            a(f"v_cvt_pk_f16_f32 {v(BA+4*mt+r)}, {v(pr+r)}, {v(pi+r)}")
        for r in range(4):
            a(f"v_cvt_pk_f16_f32 {v(BB+4*mt+r)}, {v(qr+r)}, {v(qi+r)}")
    G = T + 48
    for mt in range(2):
        for i, (bs, ri) in enumerate(((BA,0),(BA,1),(BB,0),(BB,1))):
            mfma(G + 4*i, A2 + 8*mt + 4*ri, bs + 4*mt, "0" if mt == 0 else G + 4*i)
    for r in range(4):
        a(f"v_cvt_pk_f16_f32 {v(D+r)}, {v(G+r)}, {v(G+4+r)}")
    a(f"ds_write_b64 {v(XOA)}, {v(D,2)}")
    a(f"ds_write_b64 {v(XOA)}, {v(D+2,2)} offset:1024")
    for r in range(4):
        a(f"v_cvt_pk_f16_f32 {v(D+4+r)}, {v(G+8+r)}, -{v(G+12+r)}")
    a(f"ds_write_b64 {v(XOB)}, {v(D+4,2)}")
    a(f"ds_write_b64 {v(XOB)}, {v(D+6,2)} offset:1024")
    a("s_waitcnt lgkmcnt(0)")
    a("s_barrier")
    stamp(3)
    a(f"s_cmp_eq_u32 {sr(sFix)}, 2")
    a("s_cbranch_scc1 L_extra_y")
    publish()
    a(f"s_cmp_eq_u32 {sr(sL)}, 0")
    a("s_cbranch_scc1 L_first2")
    a("L_first2_ret:")
    a("s_waitcnt vmcnt(0)")
    stamp(4)
    poll(PY, "y")
    stamp(5)
    for pc in range(2):
        a(f"ds_write2st64_b32 {v(YW+2*pc)}, {v(RX+4*pc)}, {v(RX+4*pc+1)} offset1:16")
        a(f"ds_write2st64_b32 {v(YW+2*pc+1)}, {v(RX+4*pc+2)}, {v(RX+4*pc+3)} offset1:16")
    a(f"s_cmp_ge_u32 {sr(sL)}, {nlayers-1}")
    a("s_cbranch_scc1 L_ynoclr")
    clears()
    a("L_ynoclr:")
    a(f"s_add_u32 {sr(sB)}, {sr(sB)}, 0x200000")
    a(f"s_addc_u32 {sr(sB+1)}, {sr(sB+1)}, 0")
    a("s_waitcnt lgkmcnt(0)")
    a("s_barrier")
    for i, (mt, kh) in enumerate(((0,0),(0,1),(1,0),(1,1))):
        a(f"ds_read_b128 {v(T+4*i,4)}, {v(YR+kh)} offset:{2048*mt}")
    a(f"v_mov_b32 {v(T+48)}, 0")
    a(f"v_mbcnt_lo_u32_b32 {v(T+49)}, -1, 0")
    a(f"v_mbcnt_hi_u32_b32 {v(T+49)}, -1, {v(T+49)}")
    a(f"v_lshlrev_b32 {v(T+49)}, 2, {v(T+49)}")
    a(f"ds_write_b32 {v(T+49)}, {v(T+48)} offset:{ST}")
    DY = T + 16
    for i, (mt, kh) in enumerate(((0,0),(0,1),(1,0),(1,1))):
        a(f"s_waitcnt lgkmcnt({4-i})")
        for ri in range(2):
            d = DY + 8*mt + 4*ri
            mfma(d, T + 4*i, B1Y + 8*kh + 4*ri, "0" if kh == 0 else d)
    BY = T
    for mt in range(2):
        zr, zi = DY + 8*mt, DY + 8*mt + 4
        xr, xi = T + 32 + 8*mt, T + 36 + 8*mt
        for h in range(2):
            o = 2*h; tc = TC + 4*mt + o; ts = TS + 4*mt + o
            pk("mul", xr+o, zr+o, tc)
            pk("mul", xi+o, zi+o, tc)
            pk("fma", xr+o, zi+o, ts, xr+o)
            pk("fma", xi+o, zr+o, ts, xi+o, mods="neg_lo:[1,0,0] neg_hi:[1,0,0]")
        for r in range(4):
            a(f"v_cvt_pk_f16_f32 {v(BY+4*mt+r)}, {v(xr+r)}, {v(xi+r)}")
    GY = T + 48
    for mt in range(2):
        for c in range(2):
            for hf in range(2):
                d = GY + 8*c + 4*hf
                mfma(d, A2 + 16*hf + 8*mt + 4*c, BY + 4*mt, "0" if mt == 0 else d)
    for c in range(2):
        for r in range(4):
            a(f"v_cvt_pk_f16_f32 {v(T+16+4*c+r)}, {v(GY+8*c+r)}, {v(GY+8*c+4+r)}")
            a(f"ds_write_b32 {v(YO+4*c+r)}, {v(T+16+4*c+r)} offset:{OUT}")
    a("s_waitcnt lgkmcnt(0)")
    a("s_barrier")
    stamp(6)
    publish()
    flush_stamps([0,1,2,3,4,5,6], lambda k: k)
    a(f"s_add_u32 {sr(sL)}, {sr(sL)}, 1")
    a("s_waitcnt vmcnt(0)")
    a("s_branch L_xtop")
    a(f"""
    L_extra_y:
    s_add_u32 {sr(sB)}, {sr(sB)}, 0x200000
    s_addc_u32 {sr(sB+1)}, {sr(sB+1)}, 0
    s_add_u32 {sr(sL)}, {sr(sL)}, 1
    s_barrier
    s_barrier
    s_branch L_xtop
    """)
    a(f"""
    L_xfix:
    s_cmp_eq_u32 {sr(sFix)}, 2
    s_cbranch_scc1 L_xfix2
    s_mov_b64 exec, {sr(sM5,2)}
    """)
    for pc in range(2):
        for col in range(2):
            r0 = RX + 4*pc + col
            a(f"v_alignbit_b32 {v(r0+2)}, {v(r0)}, {v(r0)}, 16")
    a(f"""
    s_mov_b64 exec, -1
    s_cmp_eq_u32 {sr(sL)}, {nlayers}
    s_cbranch_scc1 L_xupd
    s_branch L_xclr
    L_xfix2:
    """)
    for pc in range(2):
        for col in range(2):
            r0 = RX + 4*pc + col
            a(f"v_mov_b32 {v(r0)}, {v(r0+2)}")
    a("s_branch L_xupd")
    a("L_first1:")
    a(f"ds_read_b128 {v(T,4)}, {v(SRD)} offset:256")
    a(f"ds_read_b128 {v(T+8,4)}, {v(SRD)} offset:{256+64}")
    a(f"ds_read_b128 {v(T+4,4)}, {v(SRD)} offset:{256+16}")
    a(f"ds_read_b128 {v(T+12,4)}, {v(SRD)} offset:{256+80}")
    a(f"""
    s_cmp_lg_u32 {sr(sWV)}, 0
    s_cbranch_scc1 L_first1b
    s_lshl_b32 {sr(sT0)}, s2, 4
    v_mov_b32 {v(T+16)}, {sr(sT0)}
    v_mov_b32 {v(T+17)}, {sr(sTag)}
    s_mov_b64 exec, 1
    global_store_dword {v(T+16)}, {v(T+17)}, {sr(sFB,2)} sc1
    s_mov_b64 exec, -1
    L_first1b:
    s_waitcnt lgkmcnt(0)
    """)
    pk("add", T, T, T+8); pk("add", T+4, T+4, T+12); pk("add", CAO, T+6, T+14)
    pk("fma", CA2, T, sr(sK16,2), sr(sEpsP,2)) if False else None
    a(f"v_mov_b32 {v(CA2)}, {sr(sEPS)}")
    a(f"v_mov_b32 {v(CA2+1)}, {sr(sEPS)}")
    pk("fma", CA2, T, sr(sK16,2), CA2)
    pk("mul", CA, T+4, sr(sK8,2))
    a("s_branch L_first1_ret")
    a(f"""
    L_first2:
    s_mov_b32 {sr(sCnt)}, 0
    L_fpoll:
    global_load_dword {v(FL+1)}, {v(FL)}, {sr(sFB,2)} sc1
    global_load_dword {v(FL+2)}, {v(FL)}, {sr(sFB,2)} offset:2048 sc1
    s_waitcnt vmcnt(0)
    v_cmp_ne_u32 vcc, {sr(sTag)}, {v(FL+1)}
    v_cmp_ne_u32 {sr(sEx,2)}, {sr(sTag)}, {v(FL+2)}
    s_or_b64 vcc, vcc, {sr(sEx,2)}
    s_cbranch_scc0 L_first2_ret
    s_add_u32 {sr(sCnt)}, {sr(sCnt)}, 1
    s_cmp_lt_u32 {sr(sCnt)}, 0x8000
    s_cbranch_scc1 L_fpoll
    s_branch L_first2_ret
    """)
    a("L_final:")
    for q in range(8):
        pk("add", T+16+2*q, S+2*q, A+2*q)
        pk("add", T+32+2*q, S+2*q, A+2*q, mods="neg_lo:[0,1] neg_hi:[0,1]")
        a(f"v_cvt_pk_bf16_f32 {v(T+q)}, {v(T+16+2*q)}, {v(T+16+2*q+1)}")
        a(f"v_cvt_pk_bf16_f32 {v(T+8+q)}, {v(T+32+2*q)}, {v(T+32+2*q+1)}")
        a(f"ds_write_b16 {v(IOA+q)}, {v(T+q)}")
        a(f"ds_write_b16_d16_hi {v(IOA+q)}, {v(T+q)} offset:{IOROW}")
        a(f"ds_write_b16 {v(ioneg(q))}, {v(T+8+q)} offset:{3*IOROW}")
        a(f"ds_write_b16_d16_hi {v(ioneg(q))}, {v(T+8+q)} offset:{2*IOROW}")
    a("s_waitcnt lgkmcnt(0)")
    a("s_barrier")
    for i in range(4):
        a(f"ds_read_b128 {v(T+4*i,4)}, {v(IOL)} offset:{i*IOROW}")
    a("s_waitcnt lgkmcnt(3)")
    a(f"global_store_dwordx4 {v(IOG)}, {v(T,4)}, {sr(sO,2)}")
    a("s_waitcnt lgkmcnt(2)")
    a(f"global_store_dwordx4 {v(IOG+1)}, {v(T+4,4)}, {sr(sO,2)}")
    a(f"""
    s_and_b32 {sr(sT2)}, {sr(sA)}, 511
    s_cmp_eq_u32 {sr(sT2)}, 0
    s_cbranch_scc1 L_fin2
    s_waitcnt lgkmcnt(1)
    global_store_dwordx4 {v(IOG+2)}, {v(T+8,4)}, {sr(sO,2)}
    s_waitcnt lgkmcnt(0)
    global_store_dwordx4 {v(IOG+3)}, {v(T+12,4)}, {sr(sO,2)}
    L_fin2:
    s_cmp_eq_u32 {sr(sFix)}, 2
    s_cbranch_scc0 L_fin3
    s_cmp_eq_u32 {sr(sWV)}, 4
    s_cbranch_scc0 L_fin3
    v_mov_b32 {v(T+20)}, {hex(EPO-FLG)}
    v_mov_b32 {v(T+21)}, {sr(sTag)}
    s_mov_b64 exec, 1
    global_store_dword {v(T+20)}, {v(T+21)}, {sr(sFB,2)} sc1
    s_mov_b64 exec, -1
    L_fin3:
    """)
    if stamps:
        stamp(1)
        a("s_waitcnt vmcnt(0)")
        stamp(2)
        flush_stamps([0,1,2], lambda k: k)
        a(f"""
        s_cmp_lg_u32 {sr(sWV)}, 0
        s_cbranch_scc1 L_end
        """)
        if stamps == 'dbg':
            sel = [40, 40, 41, 42, 43, 3, 5, 6, 8, 16, 24, 32, 33, 34]
            a(f"s_load_dwordx2 {sr(sB,2)}, s[0:1], 88")
            a(f"v_mov_b32 {v(T+1)}, 0")
            for i, k in enumerate(sel):
                a(f"v_readlane_b32 {sr(sT0)}, {v(STV)}, {k}")
                a(f"s_and_b32 {sr(sT0)}, {sr(sT0)}, 0xfffff")
                if i == 0: a(f"s_sub_u32 {sr(sT0)}, 0xfffff, {sr(sT0)}")
                a(f"s_mov_b32 m0, {i}")
                a(f"v_writelane_b32 {v(T+1)}, {sr(sT0)}, m0")
            a(f"""
            v_cvt_f32_u32 {v(T+1)}, {v(T+1)}
            v_lshlrev_b32 {v(T)}, 2, v0
            s_mov_b64 exec, 0x3fff
            s_waitcnt lgkmcnt(0)
            global_atomic_umax {v(T)}, {v(T+1)}, {sr(sB,2)} sc1
            """)
        else:
            a(f"""
            s_add_u32 {sr(sB)}, {sr(sW)}, {hex(STAMP)}
            s_addc_u32 {sr(sB+1)}, {sr(sW+1)}, 0
            s_lshl_b32 {sr(sT0)}, s2, 8
            v_lshlrev_b32 {v(T)}, 2, v0
            v_add_u32 {v(T)}, {sr(sT0)}, {v(T)}
            global_store_dword {v(T)}, {v(STV)}, {sr(sB,2)}
            """)
    a("L_end:")
    a("s_endpgm")
    body = hz.fix(a.text())
    return wrap(body + "\n", 256, 384, LDS, T + NT, 64)

if __name__ == "__main__":
    open("k1.s", "w").write(gen())
    open("k1s.s", "w").write(gen(stamps=True))
    open("k1d.s", "w").write(gen(stamps='dbg'))
    print("ok")
```

```python
import sys, struct
from gcommon import *
from maps import *
import hz

def f2u(x): return struct.unpack('<I', struct.pack('<f', x))[0]
def fh(x): return hex(f2u(x))

XIN = 0; XAREA = 4128
YIN = 12416
OUT = YIN + 8192
JUNK = OUT + 8192
ST = JUNK + 2560
IO = ST + 512
IOAREA = 9280; IOROW = 2304
LDS = IO + 3 * IOAREA
assert YIN % 128 == 0 and OUT % 16 == 0 and ST % 16 == 0 and IO % 16 == 0
FLG = 0x3000000; EPO = 0x3010000; STAMP = 0x4000000

class RA:
    def __init__(s, start): s.n = start; s.names = {}
    def __call__(s, name, cnt=1, align=1):
        s.n = (s.n + align - 1) // align * align
        r = s.n; s.n += cnt; s.names[name] = r; return r
def v(r, n=1): return f"v{r}" if n == 1 else f"v[{r}:{r+n-1}]"
def sr(r, n=1): return f"s{r}" if n == 1 else f"s[{r}:{r+n-1}]"

def runs(m):
    m = sorted(m); out = []
    for s_, d in m:
        if out and out[-1][0] + out[-1][2] == s_ and out[-1][1] + out[-1][2] == d: out[-1][2] += 1
        else: out.append([s_, d, 1])
    return out

def gen(stamps=False, nlayers=4, dbg=None, wx=0, ost='', spin=None, lds=None, block=384):
    a = Asm()
    R = RA(1)
    TC = R('TC', 8, 2); TS = R('TS', 8, 2); QC = R('QC', 8, 2); QS = R('QS', 8, 2)
    B1XC = R('B1XC', 4, 2); B1XS = R('B1XS', 4, 2)
    B1Y = R('B1Y', 16, 2)
    A2 = R('A2', 32, 2)
    S = R('S', 16, 2); A = R('A', 16, 2)
    CA2 = R('CA2', 2, 2); CA = R('CA', 2, 2); CAO = R('CAO', 2, 2); PAR = R('PAR', 2, 2)
    VM = PAR + 1
    SENT = R('SENT', 4, 2)
    XW = R('XW', 8); XR = R('XR'); XOA = R('XOA'); XOB = R('XOB'); OR_ = R('OR')
    GST = R('GST', 4); PX = R('PX', 2); PY = R('PY', 2); YW = R('YW', 4); YR = R('YR', 2); YO = R('YO', 8)
    SA = R('SA'); SRD = R('SRD')
    IOA = R('IOA', 8); ION = R('ION', 2); IOL = R('IOL'); IOG = R('IOG', 4)
    FL = R('FL', 3)
    STV = R('STV')
    T = R('T', 0, 4)
    T = (R.n + 3) // 4 * 4
    NT = 64
    assert T + NT <= 256, T + NT
    sX, sO, sW = 4, 6, 8
    sB = 10; sWV = 12; sA = 13; sL = 14; sFix = 15; sCnt = 16; sTag = 17; sC64 = 18
    sEPS = 19; sK16 = 20; sK32 = 22; sK8 = 24; sK2 = 26; sFB = 28; sT0 = 30; sT1 = 31; sT2 = 32; sT3 = 33
    sMS = 34; sM5 = 36; sEx = 38; sEpsP = 40; sSt = 42
    nst = [0]
    def stamp(k):
        if stamps: a(f"s_memrealtime {sr(sSt + 2*k, 2)}")
    def flush_stamps(ks, basefn):
        if not stamps: return
        a("s_waitcnt lgkmcnt(0)")
        for k in ks:
            a(f"s_lshl_b32 {sr(sT0)}, {sr(sL)}, 3")
            a(f"s_add_u32 m0, {sr(sT0)}, {basefn(k)}")
            a(f"v_writelane_b32 {v(STV)}, {sr(sSt + 2*k)}, m0")
    def vbm(dst, src, m, tmp, shift=0, first=True):
        for s_, d, w in runs(m):
            if first:
                if s_ == 0 and d + shift == 0: a(f"v_and_b32 {v(dst)}, {(1<<w)-1}, {v(src)}")
                else:
                    a(f"v_bfe_u32 {v(dst)}, {v(src)}, {s_}, {w}")
                    if d + shift: a(f"v_lshlrev_b32 {v(dst)}, {d+shift}, {v(dst)}")
                first = False
            else:
                a(f"v_bfe_u32 {v(tmp)}, {v(src)}, {s_}, {w}")
                a(f"v_lshl_or_b32 {v(dst)}, {v(tmp)}, {d+shift}, {v(dst)}")
    def sbm(dst, src, m, tmp, shift=0):
        first = True
        for s_, d, w in runs(m):
            t = dst if first else tmp
            a(f"s_bfe_u32 {sr(t)}, {sr(src)}, {hex((w << 16) | s_)}")
            if d + shift: a(f"s_lshl_b32 {sr(t)}, {sr(t)}, {d+shift}")
            if not first: a(f"s_or_b32 {sr(dst)}, {sr(dst)}, {sr(tmp)}")
            first = False
    def pk(op, d, *srcs, mods=""):
        a(f"v_pk_{op}_f32 {v(d,2)}, " + ", ".join(x if isinstance(x, str) else v(x, 2) for x in srcs) + (" " + mods if mods else ""))
    def mfma(d, x, y, c):
        a(f"v_mfma_f32_16x16x32_f16 {v(d,4)}, {v(x,4)}, {v(y,4)}, {c if isinstance(c,str) else v(c,4)}")
    t0, t1, t2, t3, t4, t5, t6, t7 = [T + 48 + i for i in range(8)]
    TV = T + 56; LN = T + 57; EB = T + 58; GI = T + 59; FE = T + 60; FB = T + 61; TT = T + 62; TU = T + 63

    a(f"""
    s_cmp_ge_u32 s2, 256
    s_cbranch_scc1 L_end
    s_xor_b32 s2, s2, {wx}
    s_load_dwordx2 {sr(sX,2)}, s[0:1], 0
    s_load_dwordx2 {sr(sO,2)}, s[0:1], 80
    s_load_dwordx2 {sr(sW,2)}, s[0:1], 96
    v_lshrrev_b32 {v(t0)}, 6, v0
    v_readfirstlane_b32 {sr(sWV)}, {v(t0)}
    s_mov_b32 {sr(sFix)}, 0
    s_cmp_eq_u32 s2, 0
    s_cselect_b32 {sr(sFix)}, 1, 0
    s_cmp_lt_u32 {sr(sWV)}, 4
    s_cbranch_scc1 L_main0
    s_cmp_lg_u32 s2, 0
    s_cbranch_scc1 L_end
    s_cmp_ge_u32 {sr(sWV)}, 6
    s_cbranch_scc1 L_end
    s_mov_b32 {sr(sFix)}, 2
    L_main0:
    """)
    stamp(0)
    sbm(sA, 2, A_OF_W, sT0)
    a(f"""
    s_lshr_b32 {sr(sT1)}, {sr(sWV)}, 1
    s_or_b32 {sr(sA)}, {sr(sA)}, {sr(sT1)}
    s_cmp_eq_u32 {sr(sFix)}, 2
    s_cselect_b32 {sr(sA)}, 512, {sr(sA)}
    v_and_b32 {v(t0)}, 127, v0
    v_lshlrev_b32 {v(t1)}, 4, {v(t0)}
    s_lshl_b32 {sr(sT0)}, {sr(sA)}, 11
    v_add_u32 {v(IOG)}, {sr(sT0)}, {v(t1)}
    v_add_u32 {v(IOG+1)}, {hex(1024*2048)}, {v(IOG)}
    s_sub_u32 {sr(sT2)}, {hex(1024*2048)}, {sr(sT0)}
    v_add_u32 {v(IOG+2)}, {sr(sT2)}, {v(t1)}
    s_sub_u32 {sr(sT2)}, {hex(2048*2048)}, {sr(sT0)}
    s_and_b32 {sr(sT2)}, {sr(sT2)}, {hex(2048*2048-1)}
    v_add_u32 {v(IOG+3)}, {sr(sT2)}, {v(t1)}
    """)
    a(f"""
    v_and_b32 {v(t2)}, 255, v0
    v_lshrrev_b32 {v(t3)}, 4, {v(t2)}
    v_lshlrev_b32 {v(GST)}, 16, {v(t3)}
    v_and_b32 {v(t3)}, 15, v0
    v_lshl_or_b32 {v(GST)}, {v(t3)}, 4, {v(GST)}
    s_lshl_b32 {sr(sT2)}, s2, 8
    v_add_u32 {v(GST)}, {sr(sT2)}, {v(GST)}
    v_add_u32 {v(GST+1)}, 0x100000, {v(GST)}
    v_add_u32 {v(GST+2)}, 0x400000, {v(GST)}
    v_add_u32 {v(GST+3)}, 0x500000, {v(GST)}
    v_add_u32 {v(t4)}, 0x200000, {v(GST)}
    v_add_u32 {v(t5)}, 0x300000, {v(GST)}
    v_mov_b32 {v(SENT)}, -1
    v_mov_b32 {v(SENT+1)}, -1
    v_mov_b32 {v(SENT+2)}, -1
    v_mov_b32 {v(SENT+3)}, -1
    s_waitcnt lgkmcnt(0)
    """)
    stamp(4)
    for i in range(4):
        a(f"global_load_dwordx4 {v(T+4*i,4)}, {v(IOG+i)}, {sr(sX,2)}")
    a(f"""
    s_mov_b32 {sr(sB)}, {sr(sW)}
    s_mov_b32 {sr(sB+1)}, {sr(sW+1)}
    s_add_u32 {sr(sFB)}, {sr(sW)}, {hex(FLG)}
    s_addc_u32 {sr(sFB+1)}, {sr(sW+1)}, 0
    s_load_dword {sr(sTag)}, {sr(sFB,2)}, {hex(EPO-FLG)}
    s_cmp_eq_u32 {sr(sFix)}, 2
    s_cbranch_scc1 L_noclr0
    global_store_dwordx4 {v(GST)}, {v(SENT,4)}, {sr(sB,2)} sc1
    global_store_dwordx4 {v(GST+1)}, {v(SENT,4)}, {sr(sB,2)} sc1
    global_store_dwordx4 {v(t4)}, {v(SENT,4)}, {sr(sB,2)} sc1
    global_store_dwordx4 {v(t5)}, {v(SENT,4)}, {sr(sB,2)} sc1
    L_noclr0:
    """)
    a(f"""
    s_mov_b32 {sr(sC64)}, {fh(64.0)}
    s_mov_b32 {sr(sEPS)}, {fh(1e-5*16384.0)}
    s_mov_b32 {sr(sEpsP)}, {fh(1e-5*16384.0)}
    s_mov_b32 {sr(sEpsP+1)}, {fh(1e-5*16384.0)}
    s_mov_b32 {sr(sK16)}, {fh(16.0)}
    s_mov_b32 {sr(sK16+1)}, {fh(16.0)}
    s_mov_b32 {sr(sK32)}, {fh(32.0)}
    s_mov_b32 {sr(sK32+1)}, {fh(32.0)}
    s_mov_b32 {sr(sK8)}, {fh(0.125)}
    s_mov_b32 {sr(sK8+1)}, {fh(0.125)}
    s_mov_b32 {sr(sK2)}, {fh(2.0)}
    s_mov_b32 {sr(sK2+1)}, {fh(2.0)}
    s_mov_b32 {sr(sMS)}, 0x03030303
    s_mov_b32 {sr(sMS+1)}, 0x03030303
    s_mov_b32 {sr(sM5)}, 0x55555555
    s_mov_b32 {sr(sM5+1)}, 0x55555555
    s_mov_b32 {sr(sL)}, 0
    v_mov_b32 {v(STV)}, 0
    """)
    a(f"""
    v_mov_b32 {v(t6)}, 0
    v_and_b32 {v(t7)}, 127, v0
    v_lshlrev_b32 {v(t7)}, 2, {v(t7)}
    ds_write_b32 {v(t7)}, {v(t6)} offset:{ST}
    """)
    a(f"""
    v_and_b32 {v(LN)}, 63, v0
    v_mov_b32 {v(TV)}, v0
    v_and_b32 {v(GI)}, 1, v0
    s_cmp_eq_u32 {sr(sFix)}, 2
    s_cbranch_scc0 L_tv
    v_and_b32 {v(TV)}, 127, v0
    v_lshlrev_b32 {v(TV)}, 1, {v(TV)}
    v_mov_b32 {v(GI)}, 2
    L_tv:
    """)
    a(f"""
    s_lshr_b32 {sr(sT1)}, {sr(sWV)}, 1
    s_mul_i32 {sr(sT2)}, {sr(sT1)}, {IOAREA}
    s_add_u32 {sr(sT2)}, {sr(sT2)}, {IO}
    v_lshrrev_b32 {v(t1)}, 3, {v(t0)}
    v_add_u32 {v(t1)}, {v(t1)}, {v(t0)}
    v_lshlrev_b32 {v(IOL)}, 4, {v(t1)}
    v_add_u32 {v(IOL)}, {sr(sT2)}, {v(IOL)}
    """)
    vbm(EB, TV, XE_OF_T, TT)
    a(f"""
    v_bfe_u32 {v(t0)}, {v(TV)}, 1, 1
    v_cvt_f32_u32 {v(PAR)}, {v(t0)}
    v_mul_f32 {v(PAR)}, {fh(1.0/512)}, {v(PAR)}
    v_cmp_eq_u32 vcc, 0, {v(EB)}
    v_mov_b32 {v(VM)}, {sr(sC64)}
    v_cndmask_b32 {v(VM)}, {v(VM)}, 0, vcc
    v_mul_u32_u24 {v(t6)}, {XAREA}, {v(GI)}
    v_mul_u32_u24 {v(t7)}, {IOAREA}, {v(GI)}
    v_add_u32 {v(t7)}, {IO}, {v(t7)}
    """)
    if XIN: a(f"v_add_u32 {v(t6)}, {XIN}, {v(t6)}")
    def io_of(dst, d):
        a(f"v_lshrrev_b32 {v(TT)}, 6, {v(d)}")
        a(f"v_lshl_add_u32 {v(dst)}, {v(TT)}, 4, {v(t7)}")
        a(f"v_lshl_add_u32 {v(dst)}, {v(d)}, 1, {v(dst)}")
    def xin_of(dst, d):
        a(f"v_and_b32 {v(TT)}, 31, {v(d)}")
        a(f"v_lshl_add_u32 {v(dst)}, {v(TT)}, 6, {v(t6)}")
        a(f"v_lshrrev_b32 {v(TT)}, 7, {v(d)}")
        a(f"v_xor_b32 {v(TT)}, {v(TT)}, {v(d)}")
        a(f"v_bfe_u32 {v(TT)}, {v(TT)}, 1, 2")
        a(f"v_lshl_add_u32 {v(dst)}, {v(TT)}, 4, {v(dst)}")
        a(f"v_bfe_u32 {v(TT)}, {v(d)}, 5, 3")
        a(f"v_lshl_add_u32 {v(dst)}, {v(TT)}, 1, {v(dst)}")
    for sl in range(4):
        off = 32 * (sl & 1) + 256 * (sl >> 1)
        if sl == 0:
            a(f"v_mov_b32 {v(t1)}, 512")
            a(f"v_cndmask_b32 {v(t0)}, {v(EB)}, {v(t1)}, vcc")
        else:
            a(f"v_add_u32 {v(t0)}, {off}, {v(EB)}")
        a(f"v_sub_u32 {v(t1)}, {1024 - off}, {v(EB)}")
        a(f"v_and_b32 {v(t1)}, 1023, {v(t1)}")
        io_of(IOA + 2*sl, t0); io_of(IOA + 2*sl + 1, t1)
        xin_of(XW + 2*sl, t0); xin_of(XW + 2*sl + 1, t1)
    a(f"v_cndmask_b32 {v(ION)}, {v(IOA+1)}, {v(IOA)}, vcc")
    a(f"v_cndmask_b32 {v(ION+1)}, {v(IOA)}, {v(IOA+1)}, vcc")
    def ioneg(q):
        return ION + q if q < 2 else IOA + (q ^ 1)
    vbm(SA, LN, [(3,0),(4,1),(5,2)], TT, shift=2)
    a(f"""
    v_and_b32 {v(t0)}, 1, v0
    s_lshr_b32 {sr(sT1)}, {sr(sWV)}, 1
    s_lshl_b32 {sr(sT2)}, {sr(sT1)}, 6
    s_add_u32 {sr(sT2)}, {sr(sT2)}, {ST}
    s_cmp_eq_u32 {sr(sFix)}, 2
    s_cselect_b32 {sr(sT3)}, 6, 5
    v_lshlrev_b32 {v(t1)}, {sr(sT3)}, {v(t0)}
    v_add3_u32 {v(SA)}, {v(SA)}, {v(t1)}, {sr(sT2)}
    v_lshlrev_b32 {v(SRD)}, 5, {v(GI)}
    v_lshlrev_b32 {v(t1)}, 5, {v(GI)}
    v_and_b32 {v(t1)}, 64, {v(t1)}
    v_add_u32 {v(SRD)}, {v(SRD)}, {v(t1)}
    """)
    a(f"v_add_u32 {v(SRD)}, {ST}, {v(SRD)}")
    a(f"""
    s_mul_i32 {sr(sT2)}, {sr(sT1)}, {XAREA}
    s_add_u32 {sr(sT2)}, {sr(sT2)}, {XIN}
    v_and_b32 {v(t0)}, 15, v0
    v_lshrrev_b32 {v(t1)}, 3, {v(LN)}
    v_xor_b32 {v(t1)}, {v(t1)}, {v(LN)}
    v_bfe_u32 {v(t1)}, {v(t1)}, 1, 2
    v_lshlrev_b32 {v(XR)}, 6, {v(t0)}
    v_lshl_add_u32 {v(XR)}, {v(t1)}, 4, {v(XR)}
    v_add_u32 {v(XR)}, {sr(sT2)}, {v(XR)}
    """)
    stamp(5)
    a(f"""
    s_and_b32 {sr(sT3)}, {sr(sWV)}, 1
    s_lshl_b32 {sr(sT3)}, {sr(sT3)}, 4
    v_add_u32 {v(t1)}, {sr(sT3)}, {v(t0)}
    v_cvt_f32_u32 {v(FE)}, {v(t1)}
    v_lshrrev_b32 {v(t2)}, 4, {v(LN)}
    v_cvt_f32_u32 {v(FB)}, {v(t2)}
    v_mul_f32 {v(t3)}, {fh(1.0/1024)}, {v(FE)}
    v_mul_f32 {v(t4)}, 4.0, {v(FB)}
    v_mul_f32 {v(t4)}, {v(t4)}, {v(t3)}
    v_cvt_f32_u32 {v(t5)}, {sr(sA)}
    v_mov_b32 {v(t6)}, {fh(-0.25)}
    v_fmac_f32 {v(t6)}, {fh(1.0/2048)}, {v(t5)}
    """)
    for mt in range(2):
        for r in range(4):
            i = 4*mt + r
            a(f"v_fmamk_f32 {v(TT)}, {v(t3)}, {fh(16.0*mt + r)}, {v(t4)}")
            a(f"v_add_f32 {v(TU)}, {v(TT)}, {v(t6)}")
            a(f"v_cos_f32 {v(TC+i)}, {v(TT)}")
            a(f"v_sin_f32 {v(TS+i)}, {v(TT)}")
            a(f"v_cos_f32 {v(QC+i)}, {v(TU)}")
            a(f"v_sin_f32 {v(QS+i)}, {v(TU)}")
    a(f"""
    v_mul_f32 {v(t3)}, {fh(1.0/32)}, {v(FE)}
    v_mul_f32 {v(t4)}, {fh(8.0)}, {v(FB)}
    v_mul_f32 {v(t4)}, {v(t4)}, {v(t3)}
    """)
    for jp in range(4):
        a(f"v_fmamk_f32 {v(TT)}, {v(t3)}, {fh(2.0*jp)}, {v(t4)}")
        a(f"v_fmamk_f32 {v(TU)}, {v(t3)}, {fh(2.0*jp+1)}, {v(t4)}")
        a(f"v_cos_f32 {v(t0)}, {v(TT)}")
        a(f"v_cos_f32 {v(t1)}, {v(TU)}")
        a(f"v_sin_f32 {v(t2)}, {v(TT)}")
        a(f"v_sin_f32 {v(t5)}, {v(TU)}")
        a(f"v_cvt_pk_f16_f32 {v(B1XC+jp)}, {v(t0)}, {v(t1)}")
        a(f"v_cvt_pk_f16_f32 {v(B1XS+jp)}, -{v(t2)}, -{v(t5)}")
    def dft_tab(base, fsrc, hi=None):
        a(f"v_mul_f32 {v(t3)}, {fh(1.0/32)}, {v(fsrc)}")
        a(f"v_mul_f32 {v(t4)}, 4.0, {v(FB)}")
        a(f"v_mul_f32 {v(t4)}, {v(t4)}, {v(t3)}")
        for k in range(2):
            for jj in range(4):
                a(f"v_fmamk_f32 {v(TT)}, {v(t3)}, {fh(16.0*k + jj)}, {v(t4)}")
                a(f"v_cos_f32 {v(t0)}, {v(TT)}")
                a(f"v_sin_f32 {v(t1)}, {v(TT)}")
                a(f"v_cvt_pk_f16_f32 {v(base+8*k+jj)}, {v(t0)}, {v(t1)}")
                a(f"v_cvt_pk_f16_f32 {v(base+8*k+4+jj)}, -{v(t1)}, {v(t0)}")
                if hi is not None:
                    if jj & 1:
                        a(f"v_cvt_pk_f16_f32 {v(hi+8*k+jj)}, -{v(t0)}, -{v(t1)}")
                        a(f"v_cvt_pk_f16_f32 {v(hi+8*k+4+jj)}, {v(t1)}, -{v(t0)}")
                    else:
                        a(f"v_mov_b32 {v(hi+8*k+jj)}, {v(base+8*k+jj)}")
                        a(f"v_mov_b32 {v(hi+8*k+4+jj)}, {v(base+8*k+4+jj)}")
    dft_tab(B1Y, FE)
    vbm(t2, LN, [(0,0),(1,1),(2,3),(3,2)], TT)
    a(f"v_cvt_f32_u32 {v(FE)}, {v(t2)}")
    dft_tab(A2, FE, A2 + 16)
    stamp(6)
    vbm(XOA, LN, [(0,1),(1,2),(3,3),(2,4),(5,7),(4,8)], TT, shift=4)
    a(f"""
    v_bfe_u32 {v(t0)}, {v(LN)}, 2, 1
    s_bfe_u32 {sr(sT1)}, {sr(sWV)}, 0x10001
    v_xor_b32 {v(t0)}, {sr(sT1)}, {v(t0)}
    v_lshl_or_b32 {v(XOA)}, {v(t0)}, 4, {v(XOA)}
    s_and_b32 {sr(sT3)}, {sr(sWV)}, 1
    s_lshl_b32 {sr(sT3)}, {sr(sT3)}, 9
    s_add_u32 {sr(sT3)}, {sr(sT3)}, {OUT}
    v_add_u32 {v(XOA)}, {sr(sT3)}, {v(XOA)}
    v_add_u32 {v(XOB)}, 8, {v(XOA)}
    s_and_b32 {sr(sT2)}, {sr(sA)}, 511
    s_cmp_lg_u32 {sr(sT2)}, 0
    s_cbranch_scc1 L_xo
    s_cmp_eq_u32 {sr(sFix)}, 2
    s_cbranch_scc0 L_xo1
    v_mov_b32 {v(XOA)}, {v(XOB)}
    L_xo1:
    v_lshlrev_b32 {v(XOB)}, 3, {v(LN)}
    v_add_u32 {v(XOB)}, {JUNK}, {v(XOB)}
    L_xo:
    """)
    a(f"""
    v_and_b32 {v(t0)}, 255, v0
    v_bfe_u32 {v(t1)}, v0, 4, 1
    v_xor_b32 {v(t0)}, {v(t0)}, {v(t1)}
    v_lshlrev_b32 {v(OR_)}, 4, {v(t0)}
    v_add_u32 {v(OR_)}, {OUT}, {v(OR_)}
    """)
    sbm(sT2, 2, [(0,16),(1,17),(2,18),(6,19),(7,20),(3,5),(4,6),(5,7)], sT0)
    vbm(PX, TV, XC_OF_T, TT, shift=8)
    a(f"v_and_b32 {v(t0)}, 1, {v(TV)}")
    a(f"v_lshl_or_b32 {v(PX)}, {v(t0)}, 4, {v(PX)}")
    a(f"v_add_u32 {v(PX)}, {sr(sT2)}, {v(PX)}")
    a(f"v_add_u32 {v(PX+1)}, 0x8000, {v(PX)}")
    vbm(PY, 0, YW_OF_T, TT, shift=8)
    a(f"v_lshrrev_b32 {v(FL)}, 4, {v(PY)}")
    a(f"v_and_b32 {v(t0)}, 1, v0")
    a(f"v_lshl_or_b32 {v(PY)}, {v(t0)}, 4, {v(PY)}")
    a(f"v_add_u32 {v(PY)}, {sr(sT2)}, {v(PY)}")
    a(f"v_add_u32 {v(PY+1)}, 0x8000, {v(PY)}")
    def yin_of(dst, s_):
        a(f"v_and_b32 {v(TT)}, 31, {v(s_)}")
        a(f"v_lshlrev_b32 {v(dst)}, 7, {v(TT)}")
        a(f"v_lshrrev_b32 {v(TT)}, 7, {v(s_)}")
        a(f"v_xor_b32 {v(TT)}, {v(TT)}, {v(s_)}")
        a(f"v_and_b32 {v(TT)}, 7, {v(TT)}")
        a(f"v_lshl_add_u32 {v(dst)}, {v(TT)}, 4, {v(dst)}")
        a(f"v_bfe_u32 {v(TT)}, {v(s_)}, 5, 2")
        a(f"v_lshl_add_u32 {v(dst)}, {v(TT)}, 2, {v(dst)}")
        a(f"v_add_u32 {v(dst)}, {YIN}, {v(dst)}")
    vbm(t0, 0, YA_OF_T, TT)
    yin_of(YW, t0)
    a(f"""
    v_sub_u32 {v(t1)}, 1024, {v(t0)}
    v_mov_b32 {v(t2)}, 512
    v_cmp_eq_u32 vcc, 0, {v(t0)}
    v_cndmask_b32 {v(t1)}, {v(t1)}, {v(t2)}, vcc
    """)
    yin_of(YW + 1, t1)
    a(f"v_add_u32 {v(t1)}, 256, {v(t0)}")
    yin_of(YW + 2, t1)
    a(f"v_sub_u32 {v(t1)}, 768, {v(t0)}")
    yin_of(YW + 3, t1)
    a(f"""
    s_lshr_b32 {sr(sT1)}, {sr(sWV)}, 1
    s_lshl_b32 {sr(sT2)}, {sr(sT1)}, 12
    s_add_u32 {sr(sT2)}, {sr(sT2)}, {YIN}
    v_and_b32 {v(t0)}, 15, v0
    v_lshrrev_b32 {v(t1)}, 4, {v(LN)}
    v_and_b32 {v(t2)}, 7, v0
    v_xor_b32 {v(t1)}, {v(t1)}, {v(t2)}
    v_lshlrev_b32 {v(YR)}, 7, {v(t0)}
    v_lshl_add_u32 {v(YR)}, {v(t1)}, 4, {v(YR)}
    v_add_u32 {v(YR)}, {sr(sT2)}, {v(YR)}
    v_xor_b32 {v(YR+1)}, 64, {v(YR)}
    """)
    vbm(t0, LN, [(0,1),(1,2),(2,3),(3,4),(5,8)], TT)
    a(f"""
    s_and_b32 {sr(sT3)}, {sr(sWV)}, 1
    s_lshl_b32 {sr(sT3)}, {sr(sT3)}, 5
    v_or_b32 {v(t0)}, {sr(sT3)}, {v(t0)}
    v_bfe_u32 {v(t1)}, {v(LN)}, 4, 1
    v_cmp_eq_u32 vcc, 1, {v(t1)}
    v_lshlrev_b32 {v(t1)}, 3, {v(t1)}
    s_lshl_b32 {sr(sT2)}, {sr(sT1)}, 2
    v_add_u32 {v(t1)}, {sr(sT2)}, {v(t1)}
    v_mov_b32 {v(t5)}, 1024
    v_mov_b32 {v(t6)}, {hex((-1024) & 0xffffffff)}
    v_cndmask_b32 {v(t5)}, {v(t5)}, {v(t6)}, vcc
    """)
    for c in range(2):
        a(f"v_or_b32 {v(t2)}, {c}, {v(t0)}")
        a(f"v_sub_u32 {v(t3)}, 0, {v(t2)}")
        a(f"v_cndmask_b32 {v(t2)}, {v(t2)}, {v(t3)}, vcc")
        vbm(t3, t2, POS_OF_A, TT, shift=4)
        a(f"v_bfe_u32 {v(TT)}, {v(t2)}, 1, 1")
        a(f"v_lshlrev_b32 {v(TT)}, 4, {v(TT)}")
        a(f"v_xor_b32 {v(t3)}, {v(t3)}, {v(TT)}")
        a(f"v_add_u32 {v(t3)}, {v(t3)}, {v(t1)}")
        for r in range(4):
            if r: a(f"v_add_u32 {v(t3)}, {v(t3)}, {v(t5)}")
            a(f"v_and_b32 {v(YO+4*c+r)}, 8191, {v(t3)}")
    stamp(1)
    a("s_cmp_eq_u32 %s, 2" % sr(sFix))
    a("s_cbranch_scc1 L_w0")
    a("s_waitcnt vmcnt(4)")
    a("s_branch L_w1")
    a("L_w0:")
    a("s_waitcnt vmcnt(0)")
    a("L_w1:")
    for i in range(4):
        a(f"ds_write_b128 {v(IOL)}, {v(T+4*i,4)} offset:{i*IOROW}")
    a("s_waitcnt lgkmcnt(0)")
    a("s_barrier")
    stamp(2)
    a(f"s_mul_i32 {sr(sTag)}, {sr(sTag)}, 0x9E3779B1")
    a(f"s_add_u32 {sr(sTag)}, {sr(sTag)}, 0x7F4A7C15")
    for q in range(8):
        a(f"ds_read_u16 {v(T+2*q)}, {v(IOA+q)}")
        a(f"ds_read_u16 {v(T+2*q+1)}, {v(IOA+q)} offset:{IOROW}")
        a(f"ds_read_u16 {v(T+16+2*q)}, {v(ioneg(q))} offset:{3*IOROW}")
        a(f"ds_read_u16 {v(T+16+2*q+1)}, {v(ioneg(q))} offset:{2*IOROW}")
    a(f"s_mov_b32 {sr(sT2)}, 0.5")
    a(f"s_mov_b32 {sr(sT3)}, 0.5")
    for q in range(8):
        a(f"s_waitcnt lgkmcnt({min(15, 4*(7-q))})")
        for x in (T+2*q, T+2*q+1, T+16+2*q, T+16+2*q+1):
            a(f"v_lshlrev_b32 {v(x)}, 16, {v(x)}")
        pk("mul", T+2*q, T+2*q, sr(sT2, 2))
        pk("fma", S+2*q, T+16+2*q, sr(sT2, 2), T+2*q)
        pk("fma", A+2*q, T+16+2*q, sr(sT2, 2), T+2*q, mods="neg_lo:[1,0,0] neg_hi:[1,0,0]")
    V = T
    def sums(X, Y):
        pk("mul", V, X, X)
        if Y is not None: pk("mul", V+2, X, Y)
        pk("add", V+4, X, X+2)
        for q in range(1, 8):
            pk("fma", V, X+2*q, X+2*q, V)
            if Y is not None: pk("fma", V+2, X+2*q, Y+2*q, V+2)
            if q >= 2: pk("add", V+4, V+4, X+2*q)
        pk("mul", V+6, V+4, PAR, mods="op_sel_hi:[1,0]")
    def reduce_add(off):
        for i in range(4):
            a(f"v_permlane32_swap_b32 {v(V+i)}, {v(V+4+i)}")
        pk("add", V, V, V+4); pk("add", V+2, V+2, V+6)
        a(f"v_permlane16_swap_b32 {v(V)}, {v(V+2)}")
        a(f"v_permlane16_swap_b32 {v(V+1)}, {v(V+3)}")
        pk("add", V, V, V+2)
        a(f"v_add_f32_dpp {v(V+4)}, {v(V)}, {v(V)} row_ror:8 row_mask:0xf bank_mask:0x3")
        a(f"v_add_f32_dpp {v(V+4)}, {v(V+1)}, {v(V+1)} row_ror:8 row_mask:0xf bank_mask:0xc")
        a(f"v_add_f32_dpp {v(V+5)}, {v(V+4)}, {v(V+4)} row_shl:4 row_mask:0xf bank_mask:0xf bound_ctrl:0")
        a(f"v_add_f32_dpp {v(V+6)}, {v(V+5)}, {v(V+5)} quad_perm:[2,3,0,1] row_mask:0xf bank_mask:0xf")
        a(f"s_mov_b64 exec, {sr(sMS,2)}")
        a(f"ds_add_f32 {v(SA)}, {v(V+6)}" + (f" offset:{off}" if off else ""))
        a("s_mov_b64 exec, -1")
    a(f"v_mov_b32 {v(V+2)}, 0")
    a(f"v_mov_b32 {v(V+3)}, 0")
    sums(A, None)
    reduce_add(256)
    a("s_waitcnt vmcnt(0)")
    stamp(3)
    flush_stamps([0,1,2,3,4,5,6], lambda k: 40 + k)
    a("s_branch L_xstats")

    RX = T + 8
    def poll(P, name):
        a(f"""
        s_mov_b32 {sr(sCnt)}, 0
        L_poll{name}:
        global_load_dwordx4 {v(RX,4)}, {v(P)}, {sr(sB,2)} sc1
        global_load_dwordx4 {v(RX+4,4)}, {v(P+1)}, {sr(sB,2)} sc1
        s_waitcnt vmcnt(0)
        v_max3_u32 {v(T)}, {v(RX)}, {v(RX+1)}, {v(RX+2)}
        v_max3_u32 {v(T+1)}, {v(RX+3)}, {v(RX+4)}, {v(RX+5)}
        v_max3_u32 {v(T)}, {v(T)}, {v(RX+6)}, {v(RX+7)}
        v_max_u32 {v(T)}, {v(T)}, {v(T+1)}
        v_cmp_eq_u32 vcc, -1, {v(T)}
        s_cbranch_vccz L_done{name}
        s_mov_b64 exec, vcc
        s_add_u32 {sr(sCnt)}, {sr(sCnt)}, 1
        s_cmp_lt_u32 {sr(sCnt)}, 0x8000
        s_cbranch_scc1 L_poll{name}
        L_done{name}:
        s_mov_b64 exec, -1
        """)
    def clears():
        a(f"global_store_dwordx4 {v(GST+2)}, {v(SENT,4)}, {sr(sB,2)} sc1")
        a(f"global_store_dwordx4 {v(GST+3)}, {v(SENT,4)}, {sr(sB,2)} sc1")
    def publish():
        a(f"ds_read_b128 {v(T,4)}, {v(OR_)}")
        a(f"ds_read_b128 {v(T+4,4)}, {v(OR_)} offset:4096")
        a("s_waitcnt vmcnt(0) lgkmcnt(1)")
        a(f"global_store_dwordx4 {v(GST)}, {v(T,4)}, {sr(sB,2)} sc1")
        a("s_waitcnt lgkmcnt(0)")
        a(f"global_store_dwordx4 {v(GST+1)}, {v(T+4,4)}, {sr(sB,2)} sc1")
    a("L_xtop:")
    poll(PX, "x")
    stamp(0)
    a(f"""
    s_cmp_lg_u32 {sr(sFix)}, 0
    s_cbranch_scc1 L_xfix
    s_cmp_eq_u32 {sr(sL)}, {nlayers}
    s_cbranch_scc1 L_xupd
    L_xclr:
    """)
    clears()
    a("L_xupd:")
    a(f"s_add_u32 {sr(sB)}, {sr(sB)}, 0x200000")
    a(f"s_addc_u32 {sr(sB+1)}, {sr(sB+1)}, 0")
    for pc in range(2):
        for col in range(2):
            q = (pc*2 + col)*2
            r0 = RX + 4*pc + col; r1 = r0 + 2
            m = v(VM) if q == 0 else sr(sC64)
            a(f"v_fma_mix_f32 {v(S+2*q)}, {v(r0)}, {sr(sC64)}, {v(S+2*q)} op_sel_hi:[1,0,0]")
            a(f"v_fma_mix_f32 {v(S+2*q+1)}, {v(r0)}, {sr(sC64)}, {v(S+2*q+1)} op_sel:[1,0,0] op_sel_hi:[1,0,0]")
            a(f"v_fma_mix_f32 {v(S+2*q+2)}, {v(r1)}, {m}, {v(S+2*q+2)} op_sel:[1,0,0] op_sel_hi:[1,0,0]")
            a(f"v_fma_mix_f32 {v(S+2*q+3)}, {v(r1)}, {m}, {v(S+2*q+3)} op_sel_hi:[1,0,0]")
    a(f"s_cmp_eq_u32 {sr(sL)}, {nlayers}")
    a("s_cbranch_scc1 L_final")
    a("L_xstats:")
    sums(S, A)
    reduce_add(0)
    a("s_waitcnt lgkmcnt(0)")
    a("s_barrier")
    stamp(1)
    a(f"s_cmp_eq_u32 {sr(sL)}, 0")
    a("s_cbranch_scc1 L_first1")
    a("L_first1_ret:")
    a(f"ds_read_b128 {v(T,4)}, {v(SRD)}")
    a(f"ds_read_b128 {v(T+8,4)}, {v(SRD)} offset:64")
    a(f"ds_read_b128 {v(T+4,4)}, {v(SRD)} offset:16")
    a(f"ds_read_b128 {v(T+12,4)}, {v(SRD)} offset:80")
    T1, T2, T3, T3O = T, T+2, T+4, T+6
    WA, WB, MA, MB, RS, RD, K = T+16, T+18, T+20, T+22, T+24, T+26, T+28
    a("s_waitcnt lgkmcnt(2)")
    pk("add", T1, T1, T+8); pk("add", T2, T2, T+10)
    pk("fma", T1, T1, sr(sK16,2), CA2)
    pk("fma", WA, T2, sr(sK32,2), T1)
    pk("fma", WB, T2, sr(sK32,2), T1, mods="neg_lo:[1,0,0] neg_hi:[1,0,0]")
    a("s_waitcnt lgkmcnt(0)")
    pk("add", T3, T3, T+12); pk("add", T3O, T3O, T+14)
    pk("fma", MA, T3, sr(sK8,2), CA)
    pk("fma", MB, T3, sr(sK8,2), CA, mods="neg_lo:[0,0,1] neg_hi:[0,0,1]")
    pk("fma", WA, MA, MA, WA, mods="neg_lo:[1,0,0] neg_hi:[1,0,0]")
    pk("fma", WB, MB, MB, WB, mods="neg_lo:[1,0,0] neg_hi:[1,0,0]")
    for i in range(4): a(f"v_max_f32 {v(WA+i)}, {sr(sEPS)}, {v(WA+i)}")
    for i in range(4): a(f"v_rsq_f32 {v(WA+i)}, {v(WA+i)}")
    pk("add", RS, WA, WB)
    pk("add", RD, WA, WB, mods="neg_lo:[0,1] neg_hi:[0,1]")
    pk("mul", K, T3O, RS)
    pk("fma", K, CAO, RD, K)
    U = T + 32
    for q in range(8):
        pk("fma", U+2*q, RS, S+2*q, K, mods="neg_lo:[0,0,1] neg_hi:[0,0,1]")
    for q in range(8):
        pk("fma", U+2*q, RD, A+2*q, U+2*q)
    for q in range(8):
        pk("add", U+2*q, U+2*q, U+2*q, mods="op_sel:[0,1] op_sel_hi:[0,1] neg_hi:[0,1]")
    for q in range(8):
        a(f"v_cvt_pk_f16_f32 {v(T+q)}, {v(U+2*q)}, {v(U+2*q+1)}")
        a(f"ds_write_b16 {v(XW+q)}, {v(T+q)}")
        a(f"ds_write_b16_d16_hi {v(XW+q)}, {v(T+q)} offset:2048")
    a("s_waitcnt lgkmcnt(0)")
    a("s_barrier")
    stamp(2)
    D = T + 16
    for i, off in enumerate((0, 2048, 1024, 3072)):
        a(f"ds_read_b128 {v(T+4*i,4)}, {v(XR)} offset:{off}")
    for i in range(4):
        a(f"s_waitcnt lgkmcnt({3-i})")
        mfma(D + 8*i, T + 4*i, B1XC, "0")
        mfma(D + 8*i + 4, T + 4*i, B1XS, "0")
    BA = T; BB = T + 8
    P_ = T + 48
    for mt in range(2):
        pr, pi, qr, qi = D + 16*mt, D + 16*mt + 4, D + 16*mt + 8, D + 16*mt + 12
        for h in range(2):
            o = 2*h; tc = TC + 4*mt + o; ts = TS + 4*mt + o; qc = QC + 4*mt + o; qs = QS + 4*mt + o
            xr, xi = P_ + 4*h, P_ + 4*h + 2
            pk("mul", xr, pr+o, tc)
            pk("mul", xi, pi+o, tc)
            pk("fma", xr, pi+o, ts, xr)
            pk("fma", xi, pr+o, ts, xi, mods="neg_lo:[1,0,0] neg_hi:[1,0,0]")
            pk("fma", pr+o, qr+o, qc, xr)
            pk("fma", pi+o, qi+o, qc, xi)
            pk("fma", pr+o, qi+o, qs, pr+o)
            pk("fma", pi+o, qr+o, qs, pi+o, mods="neg_lo:[1,0,0] neg_hi:[1,0,0]")
            pk("fma", qr+o, xr, sr(sK2,2), pr+o, mods="neg_lo:[0,0,1] neg_hi:[0,0,1]")
            pk("fma", qi+o, xi, sr(sK2,2), pi+o, mods="neg_lo:[0,0,1] neg_hi:[0,0,1]")
        for r in range(4):
            a(f"v_cvt_pk_f16_f32 {v(BA+4*mt+r)}, {v(pr+r)}, {v(pi+r)}")
        for r in range(4):
            a(f"v_cvt_pk_f16_f32 {v(BB+4*mt+r)}, {v(qr+r)}, {v(qi+r)}")
    G = T + 48
    for mt in range(2):
        for i, (bs, ri) in enumerate(((BA,0),(BA,1),(BB,0),(BB,1))):
            mfma(G + 4*i, A2 + 8*mt + 4*ri, bs + 4*mt, "0" if mt == 0 else G + 4*i)
    for r in range(4):
        a(f"v_cvt_pk_f16_f32 {v(D+r)}, {v(G+r)}, {v(G+4+r)}")
    a(f"ds_write_b64 {v(XOA)}, {v(D,2)}")
    a(f"ds_write_b64 {v(XOA)}, {v(D+2,2)} offset:1024")
    for r in range(4):
        a(f"v_cvt_pk_f16_f32 {v(D+4+r)}, {v(G+8+r)}, -{v(G+12+r)}")
    a(f"ds_write_b64 {v(XOB)}, {v(D+4,2)}")
    a(f"ds_write_b64 {v(XOB)}, {v(D+6,2)} offset:1024")
    a("s_waitcnt lgkmcnt(0)")
    a("s_barrier")
    stamp(3)
    a(f"s_cmp_eq_u32 {sr(sFix)}, 2")
    a("s_cbranch_scc1 L_extra_y")
    publish()
    a(f"s_cmp_eq_u32 {sr(sL)}, 0")
    a("s_cbranch_scc1 L_first2")
    a("L_first2_ret:")
    a("s_waitcnt vmcnt(0)")
    stamp(4)
    poll(PY, "y")
    stamp(5)
    for pc in range(2):
        a(f"ds_write2st64_b32 {v(YW+2*pc)}, {v(RX+4*pc)}, {v(RX+4*pc+1)} offset1:16")
        a(f"ds_write2st64_b32 {v(YW+2*pc+1)}, {v(RX+4*pc+2)}, {v(RX+4*pc+3)} offset1:16")
    a(f"s_cmp_ge_u32 {sr(sL)}, {nlayers-1}")
    a("s_cbranch_scc1 L_ynoclr")
    clears()
    a("L_ynoclr:")
    a(f"s_add_u32 {sr(sB)}, {sr(sB)}, 0x200000")
    a(f"s_addc_u32 {sr(sB+1)}, {sr(sB+1)}, 0")
    a("s_waitcnt lgkmcnt(0)")
    a("s_barrier")
    for i, (mt, kh) in enumerate(((0,0),(0,1),(1,0),(1,1))):
        a(f"ds_read_b128 {v(T+4*i,4)}, {v(YR+kh)} offset:{2048*mt}")
    a(f"v_mov_b32 {v(T+48)}, 0")
    a(f"v_mbcnt_lo_u32_b32 {v(T+49)}, -1, 0")
    a(f"v_mbcnt_hi_u32_b32 {v(T+49)}, -1, {v(T+49)}")
    a(f"v_lshlrev_b32 {v(T+49)}, 2, {v(T+49)}")
    a(f"ds_write_b32 {v(T+49)}, {v(T+48)} offset:{ST}")
    DY = T + 16
    for i, (mt, kh) in enumerate(((0,0),(0,1),(1,0),(1,1))):
        a(f"s_waitcnt lgkmcnt({4-i})")
        for ri in range(2):
            d = DY + 8*mt + 4*ri
            mfma(d, T + 4*i, B1Y + 8*kh + 4*ri, "0" if kh == 0 else d)
    BY = T
    for mt in range(2):
        zr, zi = DY + 8*mt, DY + 8*mt + 4
        xr, xi = T + 32 + 8*mt, T + 36 + 8*mt
        for h in range(2):
            o = 2*h; tc = TC + 4*mt + o; ts = TS + 4*mt + o
            pk("mul", xr+o, zr+o, tc)
            pk("mul", xi+o, zi+o, tc)
            pk("fma", xr+o, zi+o, ts, xr+o)
            pk("fma", xi+o, zr+o, ts, xi+o, mods="neg_lo:[1,0,0] neg_hi:[1,0,0]")
        for r in range(4):
            a(f"v_cvt_pk_f16_f32 {v(BY+4*mt+r)}, {v(xr+r)}, {v(xi+r)}")
    GY = T + 48
    for mt in range(2):
        for c in range(2):
            for hf in range(2):
                d = GY + 8*c + 4*hf
                mfma(d, A2 + 16*hf + 8*mt + 4*c, BY + 4*mt, "0" if mt == 0 else d)
    for c in range(2):
        for r in range(4):
            a(f"v_cvt_pk_f16_f32 {v(T+16+4*c+r)}, {v(GY+8*c+r)}, {v(GY+8*c+4+r)}")
            a(f"ds_write_b32 {v(YO+4*c+r)}, {v(T+16+4*c+r)} offset:{OUT}")
    a("s_waitcnt lgkmcnt(0)")
    a("s_barrier")
    stamp(6)
    publish()
    flush_stamps([0,1,2,3,4,5,6], lambda k: k)
    a(f"s_add_u32 {sr(sL)}, {sr(sL)}, 1")
    a("s_waitcnt vmcnt(0)")
    a("s_branch L_xtop")
    a(f"""
    L_extra_y:
    s_add_u32 {sr(sB)}, {sr(sB)}, 0x200000
    s_addc_u32 {sr(sB+1)}, {sr(sB+1)}, 0
    s_add_u32 {sr(sL)}, {sr(sL)}, 1
    s_barrier
    s_barrier
    s_branch L_xtop
    """)
    a(f"""
    L_xfix:
    s_cmp_eq_u32 {sr(sFix)}, 2
    s_cbranch_scc1 L_xfix2
    s_mov_b64 exec, {sr(sM5,2)}
    """)
    for pc in range(2):
        for col in range(2):
            r0 = RX + 4*pc + col
            a(f"v_alignbit_b32 {v(r0+2)}, {v(r0)}, {v(r0)}, 16")
    a(f"""
    s_mov_b64 exec, -1
    s_cmp_eq_u32 {sr(sL)}, {nlayers}
    s_cbranch_scc1 L_xupd
    s_branch L_xclr
    L_xfix2:
    """)
    for pc in range(2):
        for col in range(2):
            r0 = RX + 4*pc + col
            a(f"v_mov_b32 {v(r0)}, {v(r0+2)}")
    a("s_branch L_xupd")
    a("L_first1:")
    a(f"ds_read_b128 {v(T,4)}, {v(SRD)} offset:256")
    a(f"ds_read_b128 {v(T+8,4)}, {v(SRD)} offset:{256+64}")
    a(f"ds_read_b128 {v(T+4,4)}, {v(SRD)} offset:{256+16}")
    a(f"ds_read_b128 {v(T+12,4)}, {v(SRD)} offset:{256+80}")
    a(f"""
    s_cmp_lg_u32 {sr(sWV)}, 0
    s_cbranch_scc1 L_first1b
    s_lshl_b32 {sr(sT0)}, s2, 4
    v_mov_b32 {v(T+16)}, {sr(sT0)}
    v_mov_b32 {v(T+17)}, {sr(sTag)}
    s_mov_b64 exec, 1
    global_store_dword {v(T+16)}, {v(T+17)}, {sr(sFB,2)} sc1
    s_mov_b64 exec, -1
    L_first1b:
    s_waitcnt lgkmcnt(0)
    """)
    pk("add", T, T, T+8); pk("add", T+4, T+4, T+12); pk("add", CAO, T+6, T+14)
    pk("fma", CA2, T, sr(sK16,2), sr(sEpsP,2)) if False else None
    a(f"v_mov_b32 {v(CA2)}, {sr(sEPS)}")
    a(f"v_mov_b32 {v(CA2+1)}, {sr(sEPS)}")
    pk("fma", CA2, T, sr(sK16,2), CA2)
    pk("mul", CA, T+4, sr(sK8,2))
    a("s_branch L_first1_ret")
    a(f"""
    L_first2:
    s_mov_b32 {sr(sCnt)}, 0
    L_fpoll:
    global_load_dword {v(FL+1)}, {v(FL)}, {sr(sFB,2)} sc1
    global_load_dword {v(FL+2)}, {v(FL)}, {sr(sFB,2)} offset:2048 sc1
    s_waitcnt vmcnt(0)
    v_cmp_ne_u32 vcc, {sr(sTag)}, {v(FL+1)}
    v_cmp_ne_u32 {sr(sEx,2)}, {sr(sTag)}, {v(FL+2)}
    s_or_b64 vcc, vcc, {sr(sEx,2)}
    s_cbranch_scc0 L_first2_ret
    s_add_u32 {sr(sCnt)}, {sr(sCnt)}, 1
    s_cmp_lt_u32 {sr(sCnt)}, 0x8000
    s_cbranch_scc1 L_fpoll
    s_branch L_first2_ret
    """)
    a("L_final:")
    for q in range(8):
        pk("add", T+16+2*q, S+2*q, A+2*q)
        pk("add", T+32+2*q, S+2*q, A+2*q, mods="neg_lo:[0,1] neg_hi:[0,1]")
        a(f"v_cvt_pk_bf16_f32 {v(T+q)}, {v(T+16+2*q)}, {v(T+16+2*q+1)}")
        a(f"v_cvt_pk_bf16_f32 {v(T+8+q)}, {v(T+32+2*q)}, {v(T+32+2*q+1)}")
        a(f"ds_write_b16 {v(IOA+q)}, {v(T+q)}")
        a(f"ds_write_b16_d16_hi {v(IOA+q)}, {v(T+q)} offset:{IOROW}")
        a(f"ds_write_b16 {v(ioneg(q))}, {v(T+8+q)} offset:{3*IOROW}")
        a(f"ds_write_b16_d16_hi {v(ioneg(q))}, {v(T+8+q)} offset:{2*IOROW}")
    a("s_waitcnt lgkmcnt(0)")
    a("s_barrier")
    for i in range(4):
        a(f"ds_read_b128 {v(T+4*i,4)}, {v(IOL)} offset:{i*IOROW}")
    a("s_waitcnt lgkmcnt(3)")
    a(f"global_store_dwordx4 {v(IOG)}, {v(T,4)}, {sr(sO,2)} {ost}")
    a("s_waitcnt lgkmcnt(2)")
    a(f"global_store_dwordx4 {v(IOG+1)}, {v(T+4,4)}, {sr(sO,2)} {ost}")
    a(f"""
    s_and_b32 {sr(sT2)}, {sr(sA)}, 511
    s_cmp_eq_u32 {sr(sT2)}, 0
    s_cbranch_scc1 L_fin2
    s_waitcnt lgkmcnt(1)
    global_store_dwordx4 {v(IOG+2)}, {v(T+8,4)}, {sr(sO,2)} {ost}
    s_waitcnt lgkmcnt(0)
    global_store_dwordx4 {v(IOG+3)}, {v(T+12,4)}, {sr(sO,2)} {ost}
    L_fin2:
    s_cmp_eq_u32 {sr(sFix)}, 2
    s_cbranch_scc0 L_fin3
    s_cmp_eq_u32 {sr(sWV)}, 4
    s_cbranch_scc0 L_fin3
    v_mov_b32 {v(T+20)}, {hex(EPO-FLG)}
    v_mov_b32 {v(T+21)}, {sr(sTag)}
    s_mov_b64 exec, 1
    global_store_dword {v(T+20)}, {v(T+21)}, {sr(sFB,2)} sc1
    s_mov_b64 exec, -1
    L_fin3:
    """)
    if stamps:
        stamp(1)
        a("s_waitcnt vmcnt(0)")
        stamp(2)
        flush_stamps([0,1,2], lambda k: k)
        a(f"""
        s_cmp_lg_u32 {sr(sWV)}, 0
        s_cbranch_scc1 L_end
        """)
        if stamps == 'spin':
            ka, kb, mult = spin
            a(f"""
            v_readlane_b32 {sr(sT0)}, {v(STV)}, {ka}
            v_readlane_b32 {sr(sT1)}, {v(STV)}, {kb}
            v_readlane_b32 {sr(sT2)}, {v(STV)}, 34
            s_sub_u32 {sr(sT0)}, {sr(sT1)}, {sr(sT0)}
            s_mul_i32 {sr(sT0)}, {sr(sT0)}, {mult}
            s_min_u32 {sr(sT0)}, {sr(sT0)}, 20000
            L_spin:
            s_memrealtime {sr(sSt,2)}
            s_waitcnt lgkmcnt(0)
            s_sub_u32 {sr(sT1)}, {sr(sSt)}, {sr(sT2)}
            s_cmp_lt_u32 {sr(sT1)}, {sr(sT0)}
            s_cbranch_scc1 L_spin
            """)
        elif stamps == 'dbg':
            sel = [40, 40, 41, 42, 43, 3, 5, 6, 8, 16, 24, 32, 33, 34]
            a(f"s_load_dwordx2 {sr(sB,2)}, s[0:1], 88")
            a(f"v_mov_b32 {v(T+1)}, 0")
            for i, k in enumerate(sel):
                a(f"v_readlane_b32 {sr(sT0)}, {v(STV)}, {k}")
                a(f"s_and_b32 {sr(sT0)}, {sr(sT0)}, 0xfffff")
                if i == 0: a(f"s_sub_u32 {sr(sT0)}, 0xfffff, {sr(sT0)}")
                a(f"s_mov_b32 m0, {i}")
                a(f"v_writelane_b32 {v(T+1)}, {sr(sT0)}, m0")
            a(f"""
            v_cvt_f32_u32 {v(T+1)}, {v(T+1)}
            v_lshlrev_b32 {v(T)}, 2, v0
            s_mov_b64 exec, 0x3fff
            s_waitcnt lgkmcnt(0)
            global_atomic_umax {v(T)}, {v(T+1)}, {sr(sB,2)} sc1
            """)
        else:
            a(f"""
            s_add_u32 {sr(sB)}, {sr(sW)}, {hex(STAMP)}
            s_addc_u32 {sr(sB+1)}, {sr(sW+1)}, 0
            s_lshl_b32 {sr(sT0)}, s2, 8
            v_lshlrev_b32 {v(T)}, 2, v0
            v_add_u32 {v(T)}, {sr(sT0)}, {v(T)}
            global_store_dword {v(T)}, {v(STV)}, {sr(sB,2)}
            """)
    a("L_end:")
    a("s_endpgm")
    body = hz.fix(a.text())
    return wrap(body + "\n", 256, block, lds or LDS, T + NT, 64)

if __name__ == "__main__":
    open("k1.s", "w").write(gen())
    open("k1s.s", "w").write(gen(stamps=True))
    open("k1d.s", "w").write(gen(stamps='dbg'))
    for n, kw in (("a", dict(wx=2)), ("b", dict(wx=2, ost="sc1")), ("c", dict(wx=2, ost="nt")), ("d", dict(wx=2, ost="sc0 sc1")), ("e", dict(wx=5, ost="sc0 sc1 nt"))):
        open(f"k2{n}.s", "w").write(gen(**kw))
    for n, sp in (("a", (40,40,1)), ("b", (40,34,1)), ("c", (40,5,2)), ("d", (8,32,1)), ("e", (40,41,2)), ("f", (40,3,2))):
        open(f"k3{n}.s", "w").write(gen(stamps='spin', spin=sp, ost="sc0 sc1"))
    for n, sp in (("a", (40,44,4)), ("b", (40,45,4)), ("c", (40,46,4)), ("d", (41,42,4))):
        open(f"k4{n}.s", "w").write(gen(stamps='spin', spin=sp, ost="sc0 sc1"))
    open(f"k4e.s", "w").write(gen(stamps='spin', spin=(40,40,1), ost="sc0 sc1", lds=131072))
    open(f"k4f.s", "w").write(gen(stamps='spin', spin=(40,40,1), ost="sc0 sc1", block=512))
    print("ok")
```
